```python
import torch

def _softmax(x, axis=-1):
    return torch.softmax(x, dim=axis)
def _gelu(x):
    return torch.nn.functional.gelu(x, approximate="tanh")
def _silu(x):
    return torch.nn.functional.silu(x)
def _sigmoid(x):
    return torch.sigmoid(x)
def _layernorm(x, axis=-1, eps=1e-5):
    m = x.mean(dim=axis, keepdim=True)
    v = x.var(dim=axis, keepdim=True, unbiased=False)
    return (x - m) / torch.sqrt(v + eps)
def _scatter_add(tgt, idx, src, axis=0):
    return tgt.clone().index_add_(axis, idx, src)
def _segment_sum(src, seg, n):
    out = torch.zeros((n,) + src.shape[1:], dtype=src.dtype)
    return out.index_add_(0, seg, src)
def _pad(x, pw):
    flat = tuple(v for pair in reversed(pw) for v in pair)
    return torch.nn.functional.pad(x, flat)

kernel_name = 'recurrent_scan__sliding_block_cached__mixer_s_mlp__prompt'

def setup_inputs():

    _w = (lambda a: (lambda t: t.to(torch.bfloat16) if t.is_floating_point() else t)(torch.as_tensor(a)))
    def _A_setup():
        B, Sq, D = 1, 2048, 512
        Hq, Hkv, Sk, Dh = 32, 32, 2048, 128
        assert Hq % Hkv == 0, (Hq, Hkv)
        return {
            "x": _w((lambda *s: torch.randn(*s, dtype=torch.bfloat16) * 0.05)(B, Sq, D)),
            "k_cache": _w((lambda *s: torch.randn(*s, dtype=torch.bfloat16) * 0.8)(B, Hkv, Sk, Dh)),
            "v_cache": _w((lambda *s: torch.randn(*s, dtype=torch.bfloat16) * 0.8)(B, Hkv, Sk, Dh)),
            "wq": _w((lambda *s: torch.randn(*s, dtype=torch.bfloat16) * 0.8)(D, Hq * Dh) * (D ** -0.5)),
            "wo": _w((lambda *s: torch.randn(*s, dtype=torch.bfloat16) * 0.8)(Hq * Dh, D) * ((Hq * Dh) ** -0.5)),
        }
    _A_in = _A_setup()

    def _B_setup():
        B, S, D, F = 1, 2048, 512, 1376
        return {
            "x":  _w((lambda *s: torch.randn(*s, dtype=torch.bfloat16) * 0.05)(B, S, D)),
            "w1": _w((lambda *s: torch.randn(*s, dtype=torch.bfloat16) * 3.2)(D, D) * (D ** -0.5)),
            "w2": _w((lambda *s: torch.randn(*s, dtype=torch.bfloat16) * 3.2)(D, D) * (D ** -0.5)),
            "w3": _w((lambda *s: torch.randn(*s, dtype=torch.bfloat16) * 3.2)(D, F) * (D ** -0.5)),
            "w4": _w((lambda *s: torch.randn(*s, dtype=torch.bfloat16) * 3.2)(F, D) * (F ** -0.5)),
        }
    _B_in = _B_setup()

    return {
        "A_x": _A_in["x"],
        "A_k_cache": _A_in["k_cache"],
        "A_v_cache": _A_in["v_cache"],
        "A_wq": _A_in["wq"],
        "A_wo": _A_in["wo"],
        "B_x": _B_in["x"],
        "B_w1": _B_in["w1"],
        "B_w2": _B_in["w2"],
        "B_w3": _B_in["w3"],
        "B_w4": _B_in["w4"],
    }

def reference(A_x, A_k_cache, A_v_cache, A_wq, A_wo, B_x, B_w1, B_w2, B_w3, B_w4):
    def _A_ref(x, k_cache, v_cache, wq, wo):
        B, Sq, D = x.shape
        Hq, Dh = 32, 128
        Hkv, Sk = k_cache.shape[1], k_cache.shape[2]
        W = min(4096, max(256, Sk // 4))
        rep = Hq // Hkv
        q = (lambda x, *d: x.permute(*d))((x @ wq).reshape(B, Sq, Hq, Dh), 0, 2, 1, 3)
        k = (lambda x, n, axis: torch.repeat_interleave(x, n, dim=axis))(k_cache[:, :, Sk - W:, :], rep, axis=1)
        v = (lambda x, n, axis: torch.repeat_interleave(x, n, dim=axis))(v_cache[:, :, Sk - W:, :], rep, axis=1)
        scores = torch.einsum("bhqd,bhkd->bhqk", q, k) * (Dh ** -0.5)
        p = _softmax(scores, axis=-1)
        o = torch.einsum("bhqk,bhkd->bhqd", p, v)
        return (lambda x, *d: x.permute(*d))(o, 0, 2, 1, 3).reshape(B, Sq, Hq * Dh) @ wo

    def _B_ref(x, w1, w2, w3, w4):
        B, S, D = x.shape
        h = _gelu(_layernorm(x, axis=-1) @ w1)
        c = D // 4
        g0 = _pad(h[:, :, 0*c:1*c], ((0, 0), (1, 0), (0, 0)))[:, :S, :]
        g1 = _pad(h[:, :, 1*c:2*c], ((0, 0), (0, 1), (0, 0)))[:, 1:, :]
        g2 = _pad(h[:, :, 2*c:3*c], ((0, 0), (2, 0), (0, 0)))[:, :S, :]
        g3 = _pad(h[:, :, 3*c:   ], ((0, 0), (0, 2), (0, 0)))[:, 2:, :]
        hs = torch.concatenate([g0, g1, g2, g3], axis=-1) @ w2
        x1 = x + hs
        h2 = _gelu(_layernorm(x1, axis=-1) @ w3) @ w4
        return x1 + h2

    x = A_x
    xn = _layernorm(x, axis=-1)
    s = _A_ref(xn, A_k_cache, A_v_cache, A_wq, A_wo)
    g = _silu(_B_ref(xn, B_w1, B_w2, B_w3, B_w4))
    return x + s * g
```

```python
import re
from collections import defaultdict

REG_RE = re.compile(r"^-?\|?([vas])(\d+)\|?$")
RNG_RE = re.compile(r"^-?([vas])\[(\d+):(\d+)\]$")


def regs_of(tok):
    tok = tok.strip()
    if tok.startswith("abs(") and tok.endswith(")"):
        tok = tok[4:-1]
    m = REG_RE.match(tok)
    if m:
        return [m.group(1) + m.group(2)]
    m = RNG_RE.match(tok)
    if m:
        return [m.group(1) + str(i) for i in range(int(m.group(2)), int(m.group(3)) + 1)]
    if tok in ("vcc", "m0", "exec", "scc"):
        return [tok]
    if tok in ("vcc_lo", "vcc_hi"):
        return ["vcc"]
    if tok in ("exec_lo", "exec_hi"):
        return ["exec"]
    return []


TRANS = ("v_exp_f32", "v_log_f32", "v_rcp_f32", "v_rsq_f32", "v_sqrt_f32", "v_sin_f32", "v_cos_f32")
INLINE_F = {"0.5", "-0.5", "1.0", "-1.0", "2.0", "-2.0", "4.0", "-4.0"}
VOP3_ONLY = ("v_fma_f32", "v_add3_u32", "v_lshl_add_u32", "v_add_lshl_u32", "v_and_or_b32", "v_mul_lo_u32",
             "v_mul_hi_u32", "v_mad_u32_u24", "v_max3_f32", "v_min3_f32", "v_med3_f32", "v_bfe_u32", "v_bfi_b32",
             "v_cvt_pk_bf16_f32", "v_accvgpr_read_b32", "v_accvgpr_write_b32", "v_lshl_or_b32", "v_or3_b32",
             "v_perm_b32", "v_xad_u32", "v_readlane_b32", "v_writelane_b32", "v_mbcnt_lo_u32_b32",
             "v_mbcnt_hi_u32_b32", "v_bitop3_b32", "v_alignbit_b32", "v_ldexp_f32", "v_dot2_f32_bf16")


def is_literal(tok):
    tok = tok.strip()
    if tok in INLINE_F:
        return False
    try:
        v = int(tok, 0)
        return not (-16 <= v <= 64)
    except ValueError:
        pass
    try:
        float(tok)
        return True
    except ValueError:
        return False


class Ins:
    __slots__ = ("text", "op", "kind", "rd", "wr", "cost", "size", "lid", "ltag_r", "ltag_w", "wait_vm", "wait_lg",
                 "pub", "gap", "cls", "note", "mf_c", "mf_ab", "label")

    def __init__(self, text, ltag_r=None, ltag_w=None):
        self.text = text
        self.ltag_r = ltag_r
        self.ltag_w = ltag_w
        self.wait_vm = []
        self.wait_lg = []
        self.pub = []
        self.gap = None
        self.cls = None
        self.note = ""
        self.mf_c = []
        self.mf_ab = []
        self.label = None
        self.lid = -1
        self._parse()

    def _parse(self):
        t = self.text.strip()
        rd, wr = [], []
        if t.endswith(":"):
            self.op, self.kind, self.cost, self.size = "label", "label", 0, 0
            self.rd, self.wr = [], []
            return
        sp = t.split(None, 1)
        op = sp[0]
        rest = sp[1] if len(sp) > 1 else ""
        self.op = op
        base = re.sub(r"_(e32|e64|dpp|sdwa)$", "", op)
        parts = [p.strip() for p in rest.split(",")] if rest else []
        mods = ""
        if parts:
            last = parts[-1].split(None, 1)
            parts[-1] = last[0]
            mods = last[1] if len(last) > 1 else ""
        R = [regs_of(p) for p in parts]
        flat = lambda xs: [r for x in xs for r in x]
        size = 4
        if base.startswith("v_mfma"):
            kind, cost, size = "mfma", 8, 8
            wr = R[0]
            rd = flat(R[1:])
            self.mf_c = R[3]
            self.mf_ab = R[1] + R[2]
        elif base.startswith("ds_read"):
            kind, cost, size = "dsr", 4, 8
            wr, rd = R[0], flat(R[1:])
        elif base.startswith("ds_write") or base.startswith("ds_or_b32") or base.startswith("ds_add_u32"):
            kind, cost, size = "dsw", (24 if "b128" in base else 8), 8
            rd = flat(R)
        elif base.startswith("buffer_load"):
            size = 8
            if re.search(r"\blds\b", mods):
                kind, cost = "dma", 8
                rd = flat(R) + ["m0"]
            else:
                kind, cost = "vld", 8
                wr, rd = R[0], flat(R[1:])
        elif base.startswith("buffer_store"):
            kind, cost, size = "vst", (16 if "x4" in base else 8), 8
            rd = flat(R)
        elif base.startswith("buffer_atomic"):
            kind, cost, size = "vat", 8, 8
            rd = flat(R)
            assert "sc0" not in mods.split()
        elif base in ("buffer_inv", "buffer_wbl2"):
            kind, cost, size = "vat", 8, 8
        elif base.startswith("s_load") or base in ("s_memtime", "s_memrealtime"):
            kind, cost, size = "smem", 4, 8
            wr, rd = R[0], flat(R[1:])
        elif base == "s_waitcnt":
            kind, cost = "wait", 4
        elif base == "s_barrier":
            kind, cost = "barrier", 4
        elif base == "s_nop":
            kind, cost = "nop", 4 * (int(parts[0]) + 1)
        elif base in ("s_branch", "s_endpgm", "s_sleep", "s_setprio"):
            kind, cost = "branch", 4
        elif base.startswith("s_cbranch"):
            kind, cost = "branch", 4
            rd = ["scc"] if "scc" in base else (["vcc"] if "vcc" in base else ["exec"])
        elif base.startswith("s_cmp") or base.startswith("s_bitcmp"):
            kind, cost = "salu", 4
            rd, wr = flat(R), ["scc"]
        elif base.startswith("s_"):
            kind, cost = "salu", 4
            wr, rd = list(R[0]), flat(R[1:])
            if base in ("s_addk_i32", "s_mulk_i32"):
                rd += R[0]
            if base.startswith("s_cselect") or base in ("s_addc_u32", "s_subb_u32"):
                rd.append("scc")
            if not (base.startswith("s_mov") or base.startswith("s_cselect") or base in ("s_mul_i32", "s_mul_hi_u32", "s_getpc_b64", "s_mulk_i32", "s_getreg_b32")):
                wr.append("scc")
            if "saveexec" in base:
                wr.append("exec")
                rd.append("exec")
        elif base.startswith("v_"):
            kind, cost = "valu", 4
            if base in TRANS:
                kind, cost = "trans", 8
            if base.startswith("v_permlane"):
                kind, cost = "perm", 8
                wr, rd = flat(R), flat(R)
            elif base.startswith("v_cmp"):
                wr, rd = R[0], flat(R[1:])
            else:
                wr, rd = list(R[0]), flat(R[1:])
                if base in ("v_fmac_f32",) or op.endswith("_dpp") or base == "v_writelane_b32":
                    rd += R[0]
                if base in ("v_add_co_u32", "v_addc_co_u32"):
                    wr += R[1]
            if op.endswith("_dpp") or op.endswith("_sdwa") or op.endswith("_e64") or base in VOP3_ONLY:
                size = 8
            elif base == "v_cndmask_b32" and parts[3] != "vcc":
                size = 8
            elif base.startswith("v_cmp") and parts[0] != "vcc":
                size = 8
            elif len(parts) >= 3 and not parts[2].lstrip("-").startswith("v") and not base.startswith("v_permlane"):
                size = 8
            elif any(p.startswith("-") and regs_of(p) for p in parts[1:]):
                size = 8
            rd.append("exec")
        else:
            raise ValueError("unknown op " + t)
        if size == 4 and kind in ("valu", "trans", "salu") and base not in ("s_movk_i32", "s_addk_i32", "s_mulk_i32") \
                and not base.startswith("s_cmpk"):
            if any(is_literal(p) for p in parts[1:]) or (base.startswith("s_cmp") and any(is_literal(p) for p in parts)):
                size = 8
        if kind in ("mfma", "dsr", "dsw", "dma", "vld", "vst", "vat"):
            rd = rd + ["exec"]
        self.kind, self.cost, self.size = kind, cost, size
        self.rd, self.wr = rd, wr


VM_KINDS = ("dma", "vld", "vst", "vat")
LG_KINDS = ("dsr", "dsw", "smem")
VALU_KINDS = ("valu", "trans", "perm")


class Tag:
    def __init__(self, name, lo, hi, shared):
        self.name, self.lo, self.hi, self.shared = name, lo, hi, shared
        self.writers = []
        self.readers = []


class Prog:
    def __init__(self):
        self.ins = []
        self.back = []
        self.fill = []
        self.marks = {}
        self.tags = {}
        self.ool = []
        self.warn = []
        self.nlabel = 0

    def tag(self, name, lo, hi, shared=True):
        assert name not in self.tags, name
        assert 0 <= lo < hi <= 163840, (name, lo, hi)
        t = Tag(name, lo, hi, shared)
        self.tags[name] = t
        return name

    def _mk(self, text, r=None, w=None):
        i = Ins(text, r, w)
        i.lid = len(self.ins)
        self.ins.append(i)
        if r:
            self.tags[r].readers.append(i)
        if w:
            self.tags[w].writers.append(i)
        return i

    def mark(self, name):
        assert name not in self.marks, name
        self.marks[name] = len(self.back)

    def here(self):
        return len(self.back)

    def b(self, text, r=None, w=None):
        i = self._mk(text, r, w)
        self.back.append(i)
        return i

    def f(self, text, at=None, after=None, stream=None, r=None, w=None, dl=None):
        i = self._mk(text, r, w)
        self.fill.append((i, at, after, stream, dl))
        return i

    def emit(self, text, pos=None, r=None, w=None):
        if pos is None:
            return self.b(text, r, w)
        if pos[0] == "at":
            return self.f(text, at=pos[1], r=r, w=w)
        return self.f(text, after=pos[2], stream=pos[1], r=r, w=w, dl=pos[3] if len(pos) > 3 else None)

    def wait(self, pos=None, vm=(), lg=()):
        i = self.emit("s_waitcnt auto", pos)
        i.wait_vm = list(vm)
        i.wait_lg = list(lg)
        return i

    def barrier(self, pos=None, pub=(), vm=(), lg=(), done=()):
        i = self.emit("s_barrier", pos)
        i.pub = list(pub)
        i.wait_vm = list(vm)
        i.wait_lg = list(lg)
        for t in pub:
            for w in self.tags[t].writers:
                (i.wait_vm if w.kind == "dma" else i.wait_lg).append(w)
        for t in done:
            i.wait_lg += list(self.tags[t].readers)
        return i

    def label(self, stem):
        self.nlabel += 1
        return f"L_{stem}_{self.nlabel}"

    def _g(self, g):
        if isinstance(g, tuple):
            return self.marks[g[0]] + g[1]
        return g

    def schedule(self, budget=24):
        nb = len(self.back)
        pre = [[] for _ in range(nb)]
        mem = [[] for _ in range(nb)]
        val = [[] for _ in range(nb)]
        left = [budget if i.kind == "mfma" else 0 for i in self.back]
        shadow = [i.kind == "mfma" for i in self.back]

        def put(i, g):
            g = max(0, min(g, nb - 1))
            i.gap = g
            if i.kind in VALU_KINDS or (i.kind == "branch"):
                val[g].append(i)
                left[g] -= i.cost
            elif i.kind in ("salu", "wait", "nop"):
                mem[g].append(i)
                if shadow[g]:
                    shadow[g] = False
                else:
                    left[g] -= i.cost
            else:
                mem[g].append(i)
                left[g] -= i.cost

        for (i, at, after, stream, dl) in self.fill:
            if at is not None:
                put(i, self._g(at))
        last = {}
        for (i, at, after, stream, dl) in self.fill:
            if at is not None:
                continue
            g = max(self._g(after), last.get(stream, 0))
            lim = self._g(dl) if dl is not None else nb - 1
            isval = i.kind in VALU_KINDS or i.kind == "branch"
            pv = last.get(("v", stream))
            if not isval and pv is not None and pv >= g:
                g = pv + 1
            while g < lim and (left[g] < i.cost and not (i.kind in ("salu", "wait") and shadow[g])):
                g += 1
            g = min(g, lim)
            put(i, g)
            last[stream] = g
            if isval:
                last[("v", stream)] = g
        out = []
        for g, i in enumerate(self.back):
            out.append(i)
            i.gap = g
            m = mem[g]
            out += sorted(m, key=lambda x: x.lid) + sorted(val[g], key=lambda x: x.lid)
        self.order = out
        self.left = left
        return out

    @staticmethod
    def _producers(seq):
        lastw = {}
        prod = {}
        for i in seq:
            for r in i.rd:
                prod[(i.lid, r)] = lastw.get(r, -1)
            for r in i.wr:
                lastw[r] = i.lid
        return prod, lastw

    def verify(self):
        p0, l0 = self._producers(self.ins)
        p1, l1 = self._producers(self.order)
        bad = 0
        for k, v in p0.items():
            if p1[k] != v:
                bad += 1
                if bad < 20:
                    a = self.ins[k[0]]
                    print(f"DEP ERROR: [{a.lid}] gap {a.gap} '{a.text}' reads {k[1]}: logical producer "
                          f"{self.ins[v].text if v >= 0 else None} (gap {self.ins[v].gap if v >= 0 else None}) but scheduled producer "
                          f"{self.ins[p1[k]].text if p1[k] >= 0 else None} (gap {self.ins[p1[k]].gap if p1[k] >= 0 else None})")
        assert bad == 0, f"{bad} dependency errors"

    def finalize(self):
        out = []
        vm, lg = [], []
        pend = {}
        done_at = {}
        pos_of = {}
        self.auto_waits = 0
        self.auto_nops = 0
        barriers = []
        published = {}

        def need(lst, ops):
            idx = -1
            ids = {o.lid for o in ops}
            for n, o in enumerate(lst):
                if o.lid in ids:
                    idx = n
            return idx

        def retire(lst, idx):
            for o in lst[:idx + 1]:
                done_at[o.lid] = len(out)
                for r in o.wr:
                    if pend.get(r) is o:
                        del pend[r]
            del lst[:idx + 1]

        for i in self.order:
            wv, wl = list(i.wait_vm), list(i.wait_lg)
            for o in wv + wl:
                assert o.lid in pos_of, f"wait on op not yet issued: {o.text} (gap {o.gap}) at gap {i.gap}"
            for r in list(i.rd) + list(i.wr):
                o = pend.get(r)
                if o is not None:
                    (wv if o.kind in VM_KINDS else wl).append(o)
            if i.ltag_r:
                t = self.tags[i.ltag_r]
                for w in t.writers:
                    assert w.lid in pos_of, f"LDS read of {t.name} before its writer issued: {i.text} gap {i.gap}"
                if t.shared:
                    assert t.name in published, f"LDS read of unpublished {t.name}: {i.text} gap {i.gap}"
                else:
                    for w in t.writers:
                        (wv if w.kind == "dma" else wl).append(w)
            if i.ltag_w:
                t = self.tags[i.ltag_w]
                for o in self.tags.values():
                    if o is t or o.hi <= t.lo or t.hi <= o.lo:
                        continue
                    if not o.writers or o.writers[0].lid > i.lid:
                        continue
                    acc = o.readers + o.writers
                    if o.shared or t.shared:
                        for a in acc:
                            assert a.lid in done_at, f"LDS WAR: {t.name} overwrites {o.name}; {a.text} (gap {a.gap}) not complete at gap {i.gap}"
                        lastdone = max(done_at[a.lid] for a in acc)
                        assert barriers and barriers[-1] >= lastdone, f"LDS WAR: {t.name} over {o.name} without barrier (gap {i.gap})"
                    else:
                        for a in acc:
                            assert a.lid in pos_of
                            (wv if a.kind == "dma" else wl).append(a)
            if i.kind in VM_KINDS and len(vm) >= 63:
                self.warn.append(f"vmcnt would exceed 63 at gap {i.gap}")
                wv.append(vm[len(vm) - 63])
            iv, il = need(vm, wv), need(lg, wl)
            if il >= 0 and any(o.kind == "smem" for o in lg):
                il = len(lg) - 1
            if iv >= 0 or il >= 0:
                s = "s_waitcnt"
                if iv >= 0:
                    s += f" vmcnt({len(vm) - 1 - iv})"
                if il >= 0:
                    n = len(lg) - 1 - il
                    if n > 15:
                        n = 15
                        il = len(lg) - 1 - 15
                    s += f" lgkmcnt({n})"
                w = Ins(s)
                w.gap = i.gap
                if i.kind != "wait":
                    w.note = "auto"
                    self.auto_waits += 1
                out.append(w)
                if iv >= 0:
                    retire(vm, iv)
                if il >= 0:
                    retire(lg, il)
            if i.kind == "wait":
                if i.text != "s_waitcnt auto":
                    out.append(i)
                    m = re.search(r"vmcnt\((\d+)\)", i.text)
                    if m and len(vm) > int(m.group(1)):
                        retire(vm, len(vm) - 1 - int(m.group(1)))
                    m = re.search(r"lgkmcnt\((\d+)\)", i.text)
                    if m and len(lg) > int(m.group(1)):
                        retire(lg, len(lg) - 1 - int(m.group(1)))
                continue
            n = self._hazard(out, i)
            if n > 0:
                self.auto_nops += n
                w = Ins(f"s_nop {n - 1}")
                w.gap = i.gap
                w.note = "hazard"
                out.append(w)
            pos_of[i.lid] = len(out)
            out.append(i)
            if i.kind == "barrier":
                barriers.append(len(out) - 1)
                for t in i.pub:
                    published[t] = True
            if i.kind in VM_KINDS:
                vm.append(i)
                if len(vm) > 63:
                    self.warn.append(f"vmcnt > 63 at gap {i.gap}")
            if i.kind in LG_KINDS:
                lg.append(i)
            if i.kind in ("vld", "dsr", "smem"):
                for r in i.wr:
                    pend[r] = i
        self.final = out
        return out

    @staticmethod
    def _states(i):
        if i.kind == "nop":
            return int(i.text.split()[1]) + 1
        if i.kind == "label":
            return 0
        return 1

    def _hazard(self, out, i):
        need = 0
        dist = 0
        rd, wr = set(i.rd), set(i.wr)
        isv = i.kind in VALU_KINDS
        base = re.sub(r"_(e32|e64|dpp|sdwa)$", "", i.op)
        for p in reversed(out):
            if dist >= 13:
                break
            req = 0
            pw = set(p.wr)
            pv = p.kind in VALU_KINDS
            vw = {r for r in pw if r[0] in "va" and r != "vcc"}
            sw = {r for r in pw if (r[0] == "s" and r != "scc") or r == "vcc"}
            if p.kind == "mfma":
                if i.kind == "mfma":
                    if pw & set(i.mf_ab):
                        req = 12
                    elif pw & set(i.mf_c) and list(p.wr) != list(i.mf_c):
                        req = 10
                    elif pw & wr and not (list(p.wr) == list(i.mf_c)):
                        req = max(req, 10)
                elif pw & (rd | wr):
                    req = 12
                if isv and set(p.mf_c) & wr:
                    req = max(req, 7)
            if pv:
                if i.kind == "mfma" and vw & rd:
                    req = max(req, 2)
                if i.kind == "perm" and vw & rd:
                    req = max(req, 2)
                if i.op.endswith("_dpp") and vw & rd:
                    req = max(req, 2)
                if base in ("v_readfirstlane_b32", "v_readlane_b32") and vw & rd:
                    req = max(req, 1)
                if isv and sw & rd:
                    req = max(req, 2)
                if i.kind in VM_KINDS and sw & rd:
                    req = max(req, 5)
                if i.kind == "salu" and sw & rd:
                    req = max(req, 2)
                if p.kind == "trans" and isv and i.kind != "trans" and vw & rd:
                    req = max(req, 1)
                if p.op.endswith("_sdwa") and isv and vw & (rd | wr):
                    req = max(req, 1)
            if p.kind == "salu" and "m0" in pw and i.kind == "dma":
                req = max(req, 1)
            if p.kind == "vst" and ("x4" in p.op or "x3" in p.op):
                data = set(regs_of(p.text.split(None, 1)[1].split(",")[0]))
                if data & wr:
                    req = max(req, 2)
            if p.kind == "dsw" and ("b128" in p.op or "b96" in p.op) and set(p.rd) & wr:
                req = max(req, 2)
            need = max(need, req - dist)
            dist += self._states(p)
        return need

    def estimate(self, names):
        cyc = defaultdict(int)
        over = defaultdict(int)
        nm = defaultdict(int)
        ms = sorted((self.marks[n], n) for n in names)

        def phase(g):
            cur = "pre"
            for m, n in ms:
                if g >= m:
                    cur = n
            return cur
        gaps = defaultdict(list)
        cur = None
        seq = []
        for i in self.final:
            if i.kind == "mfma":
                cur = [i]
                seq.append(cur)
            elif cur is not None and self.back[i.gap].kind == "mfma" and i.gap == cur[0].gap or (cur is not None and i.note and self.back[max(i.gap - 1, 0)] is cur[0]):
                cur.append(i)
            else:
                cur = None
                seq.append([i])
        for s in seq:
            ph = phase(s[0].gap)
            if s[0].kind == "mfma":
                c = 8
                prevv = False
                for k, i in enumerate(s[1:]):
                    cc = i.cost
                    if k == 0 and i.kind in ("salu", "wait", "nop"):
                        cc -= 4
                    if prevv and i.kind in ("dsr", "dsw") + VM_KINDS:
                        cc += 8
                    prevv = i.kind in VALU_KINDS
                    c += cc
                if c > 32:
                    over[ph] += c - 32
                cyc[ph] += max(32, c)
                nm[ph] += 1
            else:
                cyc[ph] += s[0].cost
        tot = 0
        for m, n in [(0, "pre")] + ms:
            print(f"  {n:10s} est {cyc[n]:6d} cyc  mfma {nm[n]:4d}  overflow {over[n]}")
            tot += cyc[n]
        print(f"  total est {tot}; bytes {sum(i.size for i in self.final)}; auto waits {self.auto_waits}, hazard nop states {self.auto_nops}")
        for w in self.warn[:10]:
            print("  WARN", w)

    def text(self, comments=False):
        L = []
        for i in self.final:
            t = i.text
            if comments and i.note:
                t += "  ; " + i.note
            L.append(t if i.kind == "label" else "    " + t)
        return "\n".join(L) + "\n"
```

```python
import math, struct, sys, os
sys.path.insert(0, os.path.dirname(os.path.abspath(__file__)))
from asmgen import Prog

KNAME = "recurrent_scan__sliding_block_cached__mixer_s_mlp__prompt_kernel"
K1 = 1024
OOB = 0x80000000

CNT = 0x0
STATS = 0x10000
X1ST = 0x20000
PROF = 0x80000
H = 0x100000
X1 = 0x300000
H3 = 0x500000
OO = 0x1000000
SP = 0x2000000
WS_BYTES = 0x3000000
C_ST, C_H, C_X1, C_H3, C_O, C_S = 0, 1, 2, 4, 6, 10

sR, sHd, sW, sPar, sCb, sKq, sCt, sRot, sTb = 3, 4, 5, 6, 7, 8, 9, 10, 11
sOx, sOq, sO1, sKc = 12, 13, 14, 15
sMx, sMq, sM1, sMk, sMv = 16, 17, 18, 19, 20
sTk, sTv, sCnt = 21, 22, 23
sT0, sT1, sSpin, sT2, sT3, sT4, sT5, sT6 = 24, 25, 26, 27, 28, 29, 30, 31
dX, dK, dV, dWQ, dWO, dW1, dW2, dW3, dW4, dOUT, dDBG, dWS, dH, dCODE = [32 + 4 * i for i in range(14)]
STAMPS = list(range(84, 101, 2)) + [0, 72, 74, 44, 46, 52, 54]

vL = 0
vKa = 1
vVa = 9
vKd = 13
vVd = 15
vLs = 16
vSt = 20
vXt = 28
vHv = 36
vDt = 40
vW64 = 44
vL16 = 46
vPoll = 47
vT = 48
vG = 64
vA0 = 96
vC1 = 104
vCs = 108
vGa = 112
vQ = 128
vS = 192
vP = 224
vSig = 63
vOne = 62
vGc = 61

L_X, L_WQ, L_W1, L_SCR = 0, 96 * K1, 144 * K1, 156 * K1
L_K, L_V = 64 * K1, 128 * K1
L_W3 = [0, 32 * K1, 96 * K1]
L_W2 = 96 * K1

LOG2E = 1.4426950408889634


def fhex(x):
    return "0x%08x" % struct.unpack("<I", struct.pack("<f", x))[0]


def vr(b, n=1):
    return f"v{b}" if n == 1 else f"v[{b}:{b + n - 1}]"


def ar(b, n=1):
    return f"a{b}" if n == 1 else f"a[{b}:{b + n - 1}]"


def sd(b):
    return f"s[{b}:{b + 3}]"


class Gen:
    def __init__(self, prof=False, stop=None, opts=None):
        self.P = Prog()
        self.prof = prof
        self.stop = stop
        self.o = dict(JG2=5, pfcode=True)
        if opts:
            self.o.update(opts)
        self.nstamp = 0
        self.stamp_names = []

    def e(self, t, pos=None, r=None, w=None):
        return self.P.emit(t, pos, r, w)

    def stamp(self, name, pos=None):
        if not self.prof:
            return
        s = STAMPS[self.nstamp]
        self.nstamp += 1
        self.stamp_names.append(name)
        self.e(f"s_memrealtime s[{s}:{s + 1}]" if name.startswith("rt") else f"s_memtime s[{s}:{s + 1}]", pos)

    def poll_issue(self, voff, srd, soff, pos=None):
        self._poll = f"buffer_load_dword {vr(vPoll)}, {voff}, {sd(srd)}, {soff} offen sc1"
        return self.e(self._poll, pos)

    def poll_check(self, target, pos=None):
        P = self.P
        slow, back = P.label("spin"), P.label("back")
        cmp = f"v_cmp_gt_u32 vcc, {target}, {vr(vPoll)}"
        self.e(cmp, pos)
        br = self.e(f"s_cbranch_vccnz {slow}", pos)
        br.wr = ["scc", f"s{sSpin}"]
        i = self.e(f"{back}:", pos)
        i.kind = "branch" if pos is not None else "label"
        i.cost = 0
        i.label = True
        P.ool.append(f"""{slow}:
    s_mov_b32 s{sSpin}, 0
{slow}_l:
    s_sleep 1
    {self._poll}
    s_add_u32 s{sSpin}, s{sSpin}, 1
    s_cmp_gt_u32 s{sSpin}, 0x80000
    s_waitcnt vmcnt(0)
    s_cbranch_scc1 {back}
    {cmp}
    s_cbranch_vccnz {slow}_l
    s_branch {back}
""")

    def signal(self, idx_s, pos=None):
        return self.e(f"buffer_atomic_add {vr(vOne)}, {vr(vSig)}, {sd(dWS)}, s{idx_s} offen sc1", pos)

    def mfma(self, d, a, b, c=None):
        return self.P.b(f"v_mfma_f32_32x32x16_bf16 {d}, {a}, {b}, {c if c is not None else d}")

    def trpair(self, dst_kind, dst, addr, off, jstep, tag, pos0, pos1=None):
        f = vr if dst_kind == "v" else ar
        a = self.e(f"ds_read_b64_tr_b16 {f(dst, 2)}, {vr(addr)} offset:{off}", pos0, r=tag)
        b = self.e(f"ds_read_b64_tr_b16 {f(dst + 2, 2)}, {vr(addr)} offset:{off + jstep}", pos1 or pos0, r=tag)
        return [a, b]

    def colsum(self, frag, acc0, acc1, t0, pos):
        for r in range(4):
            self.e(f"v_lshlrev_b32 {vr(t0)}, 16, {vr(frag + r)}", pos)
            self.e(f"v_and_b32 {vr(t0 + 1)}, 0xffff0000, {vr(frag + r)}", pos)
            self.e(f"v_add_f32 {vr(acc0)}, {vr(acc0)}, {vr(t0)}", pos)
            self.e(f"v_add_f32 {vr(acc1)}, {vr(acc1)}, {vr(t0 + 1)}", pos)

    def halfsum(self, v, t, pos=None):
        self.e(f"v_mov_b32 {vr(t)}, {vr(v)}", pos)
        self.e(f"v_permlane32_swap_b32 {vr(v)}, {vr(t)}", pos)
        self.e(f"v_add_f32 {vr(v)}, {vr(v)}, {vr(t)}", pos)

    def mk_cfrag(self, dst, c, t, pos=None):
        self.e(f"v_cvt_pk_bf16_f32 {vr(dst)}, {vr(c)}, {vr(c)}", pos)
        self.e(f"v_mov_b32 {vr(dst + 2)}, 0", pos)
        self.e(f"v_and_b32 {vr(t)}, 0xffff0000, {vr(dst)}", pos)
        self.e(f"v_mov_b32 {vr(dst + 3)}, 0", pos)
        self.e(f"v_sub_f32 {vr(t)}, {vr(c)}, {vr(t)}", pos)
        self.e(f"v_cvt_pk_bf16_f32 {vr(dst + 1)}, {vr(t)}, {vr(t)}", pos)

    def mk_mfrag(self, dst, m, t, pos=None):
        self.e(f"v_cmp_gt_u32 vcc, 32, {vr(vL)}", pos)
        self.e(f"v_sub_f32 {vr(t)}, 0, {vr(m)}", pos)
        self.e(f"v_mov_b32 {vr(dst + 2)}, 0", pos)
        self.e(f"v_cndmask_b32 {vr(t)}, 0, {vr(t)}, vcc", pos)
        self.e(f"v_cvt_pk_bf16_f32 {vr(dst)}, {vr(t)}, {vr(t)}", pos)
        self.e(f"v_mov_b32 {vr(dst + 3)}, 0", pos)
        self.e(f"v_and_b32 {vr(dst)}, 0xffff0000, {vr(dst)}", pos)
        self.e(f"v_sub_f32 {vr(dst)}, {vr(t)}, {vr(dst)}", pos)
        self.e(f"v_cvt_pk_bf16_f32 {vr(dst)}, {vr(t)}, {vr(dst)}", pos)
        self.e(f"v_mov_b32 {vr(dst + 1)}, {vr(dst)}", pos)

    def gelu(self, acc, n, scale, dst, t, pos=None):
        c0 = -2.0 * LOG2E * math.sqrt(2.0 / math.pi)
        for i in range(0, n, 2):
            y0, y1 = acc + i, acc + i + 1
            a, b = t + (i & 2), t + (i & 2) + 1
            self.e(f"v_mul_f32 {vr(y0)}, {vr(y0)}, {vr(scale)}", pos)
            self.e(f"v_mul_f32 {vr(y1)}, {vr(y1)}, {vr(scale)}", pos)
            self.e(f"v_mul_f32 {vr(a)}, {vr(y0)}, {vr(y0)}", pos)
            self.e(f"v_mul_f32 {vr(b)}, {vr(y1)}, {vr(y1)}", pos)
            self.e(f"v_fmaak_f32 {vr(a)}, {vr(a)}, {vr(vGc)}, {fhex(c0)}", pos)
            self.e(f"v_fmaak_f32 {vr(b)}, {vr(b)}, {vr(vGc)}, {fhex(c0)}", pos)
            self.e(f"v_mul_f32 {vr(a)}, {vr(a)}, {vr(y0)}", pos)
            self.e(f"v_mul_f32 {vr(b)}, {vr(b)}, {vr(y1)}", pos)
            self.e(f"v_exp_f32 {vr(a)}, {vr(a)}", pos)
            self.e(f"v_exp_f32 {vr(b)}, {vr(b)}", pos)
            self.e(f"v_add_f32 {vr(a)}, 1.0, {vr(a)}", pos)
            self.e(f"v_add_f32 {vr(b)}, 1.0, {vr(b)}", pos)
            self.e(f"v_rcp_f32 {vr(a)}, {vr(a)}", pos)
            self.e(f"v_rcp_f32 {vr(b)}, {vr(b)}", pos)
            self.e(f"v_mul_f32 {vr(y0)}, {vr(y0)}, {vr(a)}", pos)
            self.e(f"v_mul_f32 {vr(y1)}, {vr(y1)}, {vr(b)}", pos)
            self.e(f"v_cvt_pk_bf16_f32 {vr(dst + i // 2)}, {vr(y0)}, {vr(y1)}", pos)

    def prologue(self):
        e = self.e
        P = self.P
        e("s_cmp_ge_u32 s2, 0x100")
        e("s_cbranch_scc1 L_end")
        for d, off in [(dX, 0), (dWQ, 24), (dW1, 48), (dWS, 96), (dK, 8), (dV, 16), (dWO, 32), (dW2, 56), (dW3, 64),
                       (dW4, 72), (dOUT, 80), (dDBG, 88)]:
            e(f"s_load_dwordx2 s[{d}:{d + 1}], s[0:1], {off}")
        e(f"s_load_dwordx2 s[{dH}:{dH + 1}], s[0:1], 96")
        e(f"v_lshrrev_b32 {vr(vT)}, 6, v0")
        e(f"v_lshlrev_b32 {vr(vT + 1)}, 4, v0")
        e(f"v_readfirstlane_b32 s{sW}, {vr(vT)}")
        e(f"v_and_b32 {vr(vL)}, 63, v0")
        if self.o["pfcode"]:
            e(f"s_getpc_b64 s[{dCODE}:{dCODE + 1}]")
            e(f"s_and_b32 s{dCODE}, s{dCODE}, 0xffffff00")
            e(f"s_mov_b32 s{dCODE + 2}, CODE_BYTES")
            e(f"s_mov_b32 s{dCODE + 3}, 0x20000")
            e(f"s_lshr_b32 s{sT0}, s2, 3")
            e(f"s_lshl_b32 s{sT0}, s{sT0}, 12")
            e(f"buffer_load_dwordx4 {ar(252, 4)}, {vr(vT + 1)}, {sd(dCODE)}, s{sT0} offen")
        e(f"s_and_b32 s{sT0}, s2, 7")
        e(f"s_lshr_b32 s{sT1}, s2, 3")
        e(f"s_and_b32 s{sR}, s{sT0}, 1")
        e(f"s_lshl_b32 s{sR}, s{sR}, 2")
        e(f"s_and_b32 s{sT2}, s{sT1}, 3")
        e(f"s_add_u32 s{sR}, s{sR}, s{sT2}")
        e(f"s_lshr_b32 s{sKq}, s{sT0}, 1")
        e(f"s_lshr_b32 s{sT1}, s{sT1}, 2")
        e(f"s_lshl_b32 s{sHd}, s{sKq}, 3")
        e(f"s_add_u32 s{sHd}, s{sHd}, s{sT1}")
        e(f"s_and_b32 s{sPar}, s{sHd}, 1")
        e(f"s_lshr_b32 s{sCb}, s{sHd}, 1")
        e(f"s_lshr_b32 s{sCt}, s{sT1}, 1")
        e(f"s_lshl_b32 s{sT0}, s{sR}, 1")
        e(f"s_add_u32 s{sRot}, s{sT0}, s{sHd}")
        e(f"s_lshl_b32 s{sTb}, s{sR}, 3")
        e(f"s_lshl_b32 s{sT0}, s{sW}, 1")
        e(f"s_add_u32 s{sTb}, s{sTb}, s{sT0}")
        e(f"s_add_u32 s{sTb}, s{sTb}, s{sPar}")
        e(f"s_lshl_b32 s{sCnt}, s{sR}, 12")
        for d, n in [(dX, 2097152), (dWQ, 4194304), (dW1, 524288), (dWS, WS_BYTES), (dK, 131072), (dV, 131072),
                     (dWO, 4194304), (dW2, 524288), (dW3, 1409024), (dW4, 1409024), (dOUT, 2097152), (dDBG, 256),
                     (dH, 2097152)]:
            e(f"s_mov_b32 s{d + 2}, {n}")
            e(f"s_mov_b32 s{d + 3}, 0x20000")
        e(f"s_lshl_b32 s{sMx}, s{sW}, 13")
        e(f"s_lshl_b32 s{sMq}, s{sW}, 12")
        e(f"s_add_u32 s{sMq}, s{sMq}, {L_WQ}")
        e(f"s_lshl_b32 s{sM1}, s{sW}, 10")
        e(f"s_add_u32 s{sM1}, s{sM1}, {L_W1}")
        e(f"s_lshl_b32 s{sMk}, s{sW}, 11")
        e(f"s_add_u32 s{sMv}, s{sMk}, {L_V}")
        e(f"s_add_u32 s{sMk}, s{sMk}, {L_K}")
        l, t = vr(vL), vT
        e(f"v_lshlrev_b32 {vr(vL16)}, 4, {l}")
        e(f"v_lshrrev_b32 {vr(t)}, 4, {l}")
        e(f"v_lshrrev_b32 {vr(t + 1)}, 3, {l}")
        e(f"v_and_b32 {vr(t + 2)}, 7, {l}")
        e(f"v_xor_b32 {vr(t + 2)}, {vr(t + 2)}, {vr(t)}")
        e(f"v_lshlrev_b32 {vr(t + 2)}, 4, {vr(t + 2)}")
        e(f"v_lshl_add_u32 {vr(t + 2)}, {vr(t + 1)}, 10, {vr(t + 2)}")
        e(f"s_lshl_b32 s{sT0}, s{sR}, 18")
        e(f"s_lshl_b32 s{sT1}, s{sW}, 16")
        e(f"s_add_u32 s{sT0}, s{sT0}, s{sT1}")
        e(f"s_lshl_b32 s{sT1}, s{sPar}, 15")
        e(f"s_add_u32 s{sT2}, s{sT0}, s{sT1}")
        e(f"s_xor_b32 s{sT1}, s{sT1}, 0x8000")
        e(f"s_add_u32 s{sT3}, s{sT0}, s{sT1}")
        e(f"v_add_u32 {vr(vG + 0)}, s{sT2}, {vr(t + 2)}")
        e(f"v_add_u32 {vr(vG + 4)}, s{sT3}, {vr(t + 2)}")
        for hi in (0, 4):
            e(f"v_xor_b32 {vr(vG + hi + 1)}, 64, {vr(vG + hi)}")
            e(f"v_add_u32 {vr(vG + hi + 2)}, {2 * 7168}, {vr(vG + hi)}")
            e(f"v_add_u32 {vr(vG + hi + 3)}, {3 * 7168}, {vr(vG + hi + 1)}")
            e(f"v_add_u32 {vr(vG + hi + 1)}, {7168}, {vr(vG + hi + 1)}")
        e(f"v_and_b32 {vr(t + 3)}, 15, {l}")
        e(f"v_lshlrev_b32 {vr(t + 4)}, 2, {vr(t)}")
        e(f"v_xor_b32 {vr(t + 4)}, {vr(t + 3)}, {vr(t + 4)}")
        e(f"v_lshlrev_b32 {vr(t + 4)}, 4, {vr(t + 4)}")
        e(f"s_lshl_b32 s{sT0}, s{sW}, 17")
        e(f"s_lshl_b32 s{sT1}, s{sHd}, 8")
        e(f"s_add_u32 s{sT0}, s{sT0}, s{sT1}")
        e(f"v_lshl_add_u32 {vr(vG + 8)}, {vr(t)}, 13, {vr(t + 4)}")
        e(f"v_add_u32 {vr(vG + 8)}, s{sT0}, {vr(vG + 8)}")
        for i in (1, 2, 3):
            e(f"v_add_u32 {vr(vG + 8 + i)}, {i * (32768 - 1024)}, {vr(vG + 8)}")
        e(f"v_lshrrev_b32 {vr(t + 5)}, 2, {l}")
        e(f"v_and_b32 {vr(t + 6)}, 3, {l}")
        e(f"v_lshlrev_b32 {vr(t + 7)}, 4, {vr(t + 6)}")
        e(f"v_lshl_add_u32 {vr(vG + 12)}, {vr(t + 5)}, 10, {vr(t + 7)}")
        e(f"s_lshl_b32 s{sT0}, s{sW}, 14")
        e(f"s_lshl_b32 s{sT1}, s{sCb}, 6")
        e(f"s_add_u32 s{sT0}, s{sT0}, s{sT1}")
        e(f"v_add_u32 {vr(vG + 12)}, s{sT0}, {vr(vG + 12)}")
        e(f"v_mov_b32 {vr(t + 8)}, {hex(OOB)}")
        e(f"s_or_b32 s{sT0}, s{sW}, s{sHd}")
        e(f"s_cmp_eq_u32 s{sT0}, 0")
        e(f"s_cselect_b32 s{sT0}, 18, 0")
        e(f"s_cselect_b32 s{sT2}, 1, 0")
        e(f"v_lshlrev_b32 {vr(t + 9)}, 7, {l}")
        e(f"v_cmp_gt_u32 vcc, s{sT0}, {l}")
        e(f"v_mov_b32 {vr(vOne)}, 0")
        e(f"s_cmp_eq_u32 s{sW}, 0")
        e(f"v_cndmask_b32 {vr(t + 9)}, {vr(t + 8)}, {vr(t + 9)}, vcc")
        e(f"s_cselect_b32 s{sT1}, 1, 0")
        e(f"v_cmp_gt_u32 vcc, s{sT2}, {l}")
        e(f"s_lshl_b32 s{sT3}, s{sR}, 2")
        e(f"v_mov_b32 {vr(t + 10)}, s{sT3}")
        e(f"v_cndmask_b32 {vr(t + 10)}, {vr(t + 8)}, {vr(t + 10)}, vcc")
        e(f"v_cmp_gt_u32 vcc, s{sT1}, {l}")
        e(f"s_lshl_b32 s{sT4}, s{sR}, 18")
        e(f"s_lshl_b32 s{sT5}, s{sHd}, 13")
        e(f"v_cndmask_b32 {vr(vSig)}, {vr(t + 8)}, 0, vcc")
        e(f"s_add_u32 s{sT4}, s{sT4}, s{sT5}")
        e(f"s_lshl_b32 s{sT5}, s{sW}, 11")
        e(f"s_add_u32 s{sT4}, s{sT4}, s{sT5}")
        e("s_waitcnt lgkmcnt(0)")
        self.stamp("start")
        zst = e(f"buffer_store_dword {vr(vOne)}, {vr(t + 9)}, {sd(dWS)}, s{sCnt} offen sc1")
        e(f"buffer_load_dwordx4 {vr(vS, 4)}, {vr(vL16)}, {sd(dX)}, s{sT4} offen")
        e(f"buffer_load_dwordx4 {vr(vS + 4, 4)}, {vr(vL16)}, {sd(dX)}, s{sT4} offen offset:1024")
        for s in range(3):
            self.q_dma(s, None)
        e(f"s_lshl_b32 s{sT0}, s{sHd}, 19")
        e(f"s_add_u32 s{sT0}, s{sT0}, {1536 * 256}")
        for d in (dK, dV):
            e(f"s_add_u32 s{d}, s{d}, s{sT0}")
            e(f"s_addc_u32 s{d + 1}, s{d + 1}, 0")
        e(f"s_add_u32 s{dH}, s{dH}, {H}")
        e(f"s_addc_u32 s{dH + 1}, s{dH + 1}, 0")
        e(f"v_lshrrev_b32 {vr(t + 11)}, 5, {l}")
        e(f"v_and_b32 {vr(t + 12)}, 31, {l}")
        e(f"v_bfe_u32 {vr(t + 13)}, {l}, 2, 2")
        e(f"v_and_b32 {vr(t + 1)}, 1, {l}")
        e(f"v_lshlrev_b32 {vr(t + 1)}, 4, {vr(t + 1)}")
        e(f"v_and_b32 {vr(t + 2)}, 2, {l}")
        e(f"v_lshl_or_b32 {vr(t + 1)}, {vr(t + 2)}, 2, {vr(t + 1)}")
        e(f"v_and_b32 {vr(t + 2)}, 16, {l}")
        e(f"v_lshl_or_b32 {vr(t + 1)}, {vr(t + 2)}, 1, {vr(t + 1)}")
        e(f"v_lshl_add_u32 {vr(t + 2)}, {vr(t + 11)}, 3, {vr(t + 13)}")
        e(f"v_lshl_add_u32 {vr(vW64)}, {vr(t + 2)}, 6, {vr(t + 1)}")
        e(f"v_add_u32 {vr(vW64 + 1)}, {96 * K1}, {vr(vW64)}")
        e(f"v_add_u32 {vr(vG + 25)}, {L_W1}, {vr(vW64)}")
        e(f"s_lshl_b32 s{sT0}, s{sW}, 10")
        e(f"v_add_u32 {vr(vG + 26)}, s{sT0}, {vr(vG + 25)}")
        e(f"v_lshl_add_u32 {vr(t + 2)}, {vr(t + 2)}, 8, {vr(t + 1)}")
        e(f"v_lshl_add_u32 {vr(t + 2)}, {vr(t + 13)}, 6, {vr(t + 2)}")
        e(f"v_add_u32 {vr(vVa)}, {L_V}, {vr(t + 2)}")
        e(f"s_lshl_b32 s{sT0}, s{sW}, 6")
        e(f"v_xor_b32 {vr(t + 2)}, s{sT0}, {vr(t + 2)}")
        e(f"v_add_u32 {vr(vG + 21)}, {L_WQ}, {vr(t + 2)}")
        for q in (1, 2, 3):
            e(f"v_xor_b32 {vr(vVa + q)}, {q * 64}, {vr(vVa)}")
            e(f"v_xor_b32 {vr(vG + 21 + q)}, {q * 64}, {vr(vG + 21)}")
        e(f"v_bfe_u32 {vr(t + 2)}, {l}, 1, 3")
        e(f"v_xor_b32 {vr(t + 2)}, {vr(t + 2)}, {vr(t + 11)}")
        e(f"v_lshlrev_b32 {vr(t + 2)}, 4, {vr(t + 2)}")
        e(f"v_lshl_add_u32 {vr(t + 2)}, {vr(t + 12)}, 7, {vr(t + 2)}")
        e(f"v_add_u32 {vr(vG + 13)}, s{sMx}, {vr(t + 2)}")
        for ks in (1, 2, 3):
            e(f"v_xor_b32 {vr(vG + 13 + ks)}, {ks * 32}, {vr(vG + 13)}")
        for ks in range(4):
            e(f"v_add_u32 {vr(vG + 17 + ks)}, 0x10000, {vr(vG + 13 + ks)}")
        e(f"v_and_b32 {vr(t + 2)}, 19, {l}")
        e(f"v_and_b32 {vr(t + 1)}, 4, {l}")
        e(f"v_lshl_or_b32 {vr(t + 2)}, {vr(t + 1)}, 1, {vr(t + 2)}")
        e(f"v_and_b32 {vr(t + 1)}, 8, {l}")
        e(f"v_lshrrev_b32 {vr(t + 1)}, 1, {vr(t + 1)}")
        e(f"v_or_b32 {vr(t + 2)}, {vr(t + 2)}, {vr(t + 1)}")
        e(f"v_and_b32 {vr(t + 1)}, 15, {vr(t + 2)}")
        e(f"v_xor_b32 {vr(t + 1)}, {vr(t + 1)}, {vr(t + 11)}")
        e(f"v_lshlrev_b32 {vr(t + 1)}, 4, {vr(t + 1)}")
        e(f"v_lshl_add_u32 {vr(t + 2)}, {vr(t + 2)}, 8, {vr(t + 1)}")
        e(f"v_xor_b32 {vr(t + 2)}, s{sT0}, {vr(t + 2)}")
        e(f"v_add_u32 {vr(vKa)}, {L_K}, {vr(t + 2)}")
        for n in range(1, 8):
            e(f"v_xor_b32 {vr(vKa + n)}, {n * 32}, {vr(vKa)}")
        e(f"s_lshl_b32 s{sT0}, s{sW}, 11")
        e(f"v_lshl_add_u32 {vr(vVd)}, {vr(t)}, 8, {vr(t + 4)}")
        e(f"v_add_u32 {vr(vVd)}, s{sT0}, {vr(vVd)}")
        e(f"s_and_b32 s{sT1}, s{sW}, 1")
        e(f"s_lshl_b32 s{sT1}, s{sT1}, 3")
        e(f"v_xor_b32 {vr(t + 1)}, {vr(t + 3)}, {vr(t)}")
        e(f"v_xor_b32 {vr(t + 1)}, s{sT1}, {vr(t + 1)}")
        e(f"v_lshlrev_b32 {vr(t + 1)}, 4, {vr(t + 1)}")
        e(f"v_lshl_add_u32 {vr(vKd)}, {vr(t)}, 8, {vr(t + 1)}")
        e(f"v_add_u32 {vr(vKd)}, s{sT0}, {vr(vKd)}")
        e(f"v_xor_b32 {vr(vKd + 1)}, 64, {vr(vKd)}")
        e(f"v_mov_b32 {vr(vGc)}, {fhex(-2.0 * LOG2E * math.sqrt(2.0 / math.pi) * 0.044715)}")
        for i in range(4):
            e(f"v_mov_b32 {vr(vCs + i)}, 0")
            e(f"v_mov_b32 {vr(vLs + i)}, 0")
        e(f"v_mov_b32 {vr(vOne)}, 1")
        P.wait(vm=[zst])
        e(f"buffer_store_dword {vr(vOne)}, {vr(t + 10)}, {sd(dDBG)}, 0 offen sc1")
        u = vP
        for rw in range(2):
            for r in range(4):
                e(f"v_lshlrev_b32 {vr(u + 8 * rw + 2 * r)}, 16, {vr(vS + 4 * rw + r)}")
                e(f"v_and_b32 {vr(u + 8 * rw + 2 * r + 1)}, 0xffff0000, {vr(vS + 4 * rw + r)}")
        a = vS + 8
        for rw in range(2):
            e(f"v_add_f32 {vr(a + rw)}, {vr(u + 8 * rw)}, {vr(u + 8 * rw + 1)}")
        for i in range(2, 8):
            for rw in range(2):
                e(f"v_add_f32 {vr(a + rw)}, {vr(a + rw)}, {vr(u + 8 * rw + i)}")
        self.allreduce2(a, a + 2)
        for rw in range(2):
            e(f"v_mul_f32 {vr(a + rw)}, {fhex(1.0 / 512)}, {vr(a + rw)}")
        b = vS + 12
        for i in range(8):
            for rw in range(2):
                e(f"v_sub_f32 {vr(u + 8 * rw + i)}, {vr(u + 8 * rw + i)}, {vr(a + rw)}")
        for rw in range(2):
            e(f"v_mul_f32 {vr(b + rw)}, {vr(u + 8 * rw)}, {vr(u + 8 * rw)}")
        for i in range(1, 8):
            for rw in range(2):
                e(f"v_fmac_f32 {vr(b + rw)}, {vr(u + 8 * rw + i)}, {vr(u + 8 * rw + i)}")
        self.allreduce2(b, a + 2)
        e(f"v_cmp_eq_u32 vcc, 0, {l}")
        e(f"v_mov_b32 {vr(u + 3)}, 0")
        e(f"v_mov_b32 {vr(u + 5)}, {fhex(1e-5)}")
        e(f"v_cndmask_b32 {vr(u)}, {vr(a + 1)}, {vr(a)}, vcc")
        e(f"v_cndmask_b32 {vr(u + 4)}, {vr(b + 1)}, {vr(b)}, vcc")
        e(f"v_mul_f32 {vr(u + 4)}, {fhex(1.0 / 512)}, {vr(u + 4)}")
        e(f"v_add_f32 {vr(u + 1)}, {vr(u + 4)}, {vr(u + 5)}")
        e(f"v_rsq_f32 {vr(u + 1)}, {vr(u + 1)}")
        e(f"v_cmp_gt_u32 vcc, 2, {l}")
        e(f"v_mul_f32 {vr(u + 4)}, {vr(u + 4)}, {vr(u + 1)}")
        e(f"v_fmac_f32 {vr(u + 5)}, {vr(u + 4)}, {vr(u + 1)}")
        e(f"v_rsq_f32 {vr(u + 5)}, {vr(u + 5)}")
        e(f"v_cndmask_b32 {vr(u + 6)}, {vr(t + 8)}, {vr(vL16)}, vcc")
        e(f"v_mul_f32 {vr(u + 2)}, {vr(u + 5)}, {vr(u + 1)}")
        e(f"s_lshr_b32 s{sT4}, s{sT4}, 6")
        e(f"s_add_u32 s{sT4}, s{sT4}, {STATS}")
        self.st_store = e(f"buffer_store_dwordx4 {vr(u, 4)}, {vr(u + 6)}, {sd(dWS)}, s{sT4} offen sc1")
        e(f"v_cmp_gt_u32 vcc, 8, {l}")
        e(f"v_lshlrev_b32 {vr(vHv)}, 2, {l}")
        e(f"v_mov_b32 {vr(vHv + 1)}, 0")
        e(f"v_cndmask_b32 {vr(vHv)}, {vr(t + 8)}, {vr(vHv)}, vcc")
        e(f"v_cndmask_b32 {vr(vHv + 1)}, 0, {vr(vOne)}, vcc")

    def allreduce2(self, a, t):
        e = self.e
        for m in ("quad_perm:[1,0,3,2]", "quad_perm:[2,3,0,1]", "row_half_mirror", "row_mirror"):
            for rw in range(2):
                e(f"v_add_f32_dpp {vr(a + rw)}, {vr(a + rw)}, {vr(a + rw)} {m} row_mask:0xf bank_mask:0xf")
        for op in ("v_permlane16_swap_b32", "v_permlane32_swap_b32"):
            for rw in range(2):
                e(f"v_mov_b32 {vr(t + rw)}, {vr(a + rw)}")
            for rw in range(2):
                e(f"{op} {vr(a + rw)}, {vr(t + rw)}")
            for rw in range(2):
                e(f"v_add_f32 {vr(a + rw)}, {vr(a + rw)}, {vr(t + rw)}")

    def q_dma(self, s, gaps):
        P, e = self.P, self.e
        sl = s % 3
        tx = P.tag(f"x{s}", L_X + sl * 32 * K1, L_X + (sl + 1) * 32 * K1, shared=False)
        tq = P.tag(f"q{s}", L_WQ + sl * 16 * K1, L_WQ + (sl + 1) * 16 * K1)
        t1 = P.tag(f"w1_{s}", L_W1 + sl * 4 * K1, L_W1 + (sl + 1) * 4 * K1)
        at = (lambda n, d=0: ("at", gaps[n] + d)) if gaps else (lambda n, d=0: None)
        g0 = at(0, -4)
        e(f"s_add_u32 s{sKc}, s{sRot}, {s}", g0)
        e(f"s_and_b32 s{sKc}, s{sKc}, 7", g0)
        e(f"s_lshl_b32 s{sOq}, s{sKc}, 19", at(0, -3))
        e(f"s_lshl_b32 s{sOx}, s{sKc}, 7", at(0, -2))
        n = 0
        e(f"s_add_u32 m0, s{sMq}, {sl * 16 * K1}", at(n, -1))
        if not gaps:
            e(f"s_lshl_b32 s{sO1}, s{sKc}, 16")
        for i in range(4):
            e(f"buffer_load_dwordx4 {vr(vG + 8 + i)}, {sd(dWQ)}, s{sOq} offen offset:{i * 1024} lds", at(n), w=tq)
            n += 1
        for hi in range(2):
            e(f"s_add_u32 m0, s{sMx}, {sl * 32 * K1 + hi * 4096}", at(n, -1))
            for i in range(4):
                e(f"buffer_load_dwordx4 {vr(vG + 4 * hi + i)}, {sd(dX)}, s{sOx} offen offset:{i * 1024} lds", at(n), w=tx)
                n += 1
        if gaps:
            e(f"s_lshl_b32 s{sO1}, s{sKc}, 16", at(n, -2))
        e(f"s_add_u32 m0, s{sM1}, {sl * 4 * K1}", at(n, -1))
        e(f"buffer_load_dwordx4 {vr(vG + 12)}, {sd(dW1)}, s{sO1} offen lds", at(n), w=t1)

    def q_reads(self, n, gaps):
        s, ks = n >> 2, n & 3
        sl, p = s % 3, n & 1
        e = self.e
        at = (lambda k: ("at", gaps[k])) if gaps else (lambda k: None)
        ops = []
        ops += self.trpair("v", vA0 + 4 * p, vG + 21, sl * 16 * K1 + ks * 4096, 1024, f"q{s}", at(0))
        xa = (vG + 13 + ks) if sl < 2 else (vG + 17 + ks)
        xo = sl * 32 * K1 if sl < 2 else 0
        for b in range(2):
            ops.append(e(f"ds_read_b128 {ar(32 + 8 * p + 4 * b, 4)}, {vr(xa)} offset:{xo + b * 4096}", at(1), r=f"x{s}"))
        for q in (1, 2, 3):
            ops += self.trpair("a", 16 * p + 4 * (q - 1), vG + 21 + q, sl * 16 * K1 + ks * 4096, 1024, f"q{s}", at(1 + q))
        ops += self.trpair("a", 16 * p + 12, vG + 25, sl * 4 * K1 + ks * 1024, 256, f"w1_{s}", at(5))
        return ops

    def kv_dma(self, kind, j, gaps):
        P, e = self.P, self.e
        ns = 4 if kind == "K" else 3
        base = (L_K if kind == "K" else L_V) + (j % ns) * 8 * K1
        tg = P.tag(f"{kind}{j}", base, base + 8 * K1)
        st = sTk if kind == "K" else sTv
        at = (lambda n, d=0: ("at", self.add(gaps[n], d))) if gaps else (lambda n, d=0: None)
        e(f"s_lshl_b32 s{st}, s{sR}, 1", at(0, -3))
        e(f"s_add_u32 s{st}, s{st}, {j}", at(0, -3))
        e(f"s_and_b32 s{st}, s{st}, 15", at(0, -2))
        e(f"s_lshl_b32 s{st}, s{st}, 13", at(0, -2))
        e(f"s_add_u32 m0, s{sMk if kind == 'K' else sMv}, {(j % ns) * 8 * K1}", at(0, -1))
        for i in range(2):
            v = (vKd + i) if kind == "K" else vVd
            e(f"buffer_load_dwordx4 {vr(v)}, {sd(dK if kind == 'K' else dV)}, s{st} offen offset:{i * 1024} lds", at(i), w=tg)

    @staticmethod
    def add(g, d):
        return (g[0], g[1] + d) if isinstance(g, tuple) else g + d

    def w64_voff(self, stride, scol, pos):
        e = self.e
        e(f"s_mul_i32 s{sT5}, s{sW}, {128 * stride}", pos)
        e(f"s_add_u32 s{sT5}, s{sT5}, s{scol}", pos)
        e(f"v_lshrrev_b32 {vr(vDt)}, 2, {vr(vL)}", pos)
        e(f"v_mul_u32_u24 {vr(vDt)}, {stride}, {vr(vDt)}", pos)
        e(f"v_and_b32 {vr(vDt + 1)}, 3, {vr(vL)}", pos)
        e(f"v_lshl_add_u32 {vr(vDt)}, {vr(vDt + 1)}, 4, {vr(vDt)}", pos)
        e(f"v_add_u32 {vr(vDt)}, s{sT5}, {vr(vDt)}", pos)
        for i in (1, 2, 3):
            e(f"v_add_u32 {vr(vDt + i)}, {i * (16 * stride - 1024)}, {vr(vDt)}", pos)

    def w64_dma(self, tag, srd, stride, ldsbase, extra, gaps):
        P, e = self.P, self.e
        tg = P.tag(tag, ldsbase, ldsbase + 32 * K1)
        at = (lambda n, d=0: ("at", self.add(gaps[n], d))) if gaps else (lambda n, d=0: None)
        for n in range(8):
            if n % 4 == 0:
                e(f"s_mov_b32 s{sT6}, {(n >> 2) * 64 * stride + extra}", at(n, -2))
                e(f"s_add_u32 m0, s{sMx}, {ldsbase + (n >> 2) * 4096}", at(n, -1))
            e(f"buffer_load_dwordx4 {vr(vDt + (n & 3))}, {sd(srd)}, s{sT6} offen offset:{(n & 3) * 1024} lds", at(n), w=tg)

    def qproj(self):
        P, e = self.P, self.e
        P.barrier(pub=["q0", "w1_0"])
        rd = self.q_reads(0, None)
        P.mark("qproj")
        Q0 = P.here()
        qb = lambda n: Q0 + 9 * n
        for n in range(32):
            s, ks, p = n >> 2, n & 3, n & 1
            g = qb(n)
            if ks == 3:
                pub = [f"q{s + 1}", f"w1_{s + 1}"] if s < 7 else []
                vm = list(P.tags[f"x{s + 1}"].writers) if s < 7 else []
                if s == 1:
                    vm.append(self.st_store)
                P.barrier(("at", g), pub=pub, vm=vm, done=[f"q{s}", f"w1_{s}", f"x{s}"])
                if s == 1:
                    self.signal(sCnt, ("at", g + 1))
            nxt = None
            if n < 31:
                nxt = self.q_reads(n + 1, [g + k for k in range(6)] if ks != 3 else [g + 1 + k for k in range(6)])
                P.wait(("at", g + 8), lg=nxt)
            if ks == 1:
                self.trpair("v", vC1, vG + 26, (s % 3) * 4 * K1, 256, f"w1_{s}", ("at", g + 6))
            if ks == 3:
                dg = [g + 7, g + 8] + [g + 9 * a + b for a in (1, 2, 3) for b in (5, 6, 7, 8)]
                if s + 3 < 8:
                    self.q_dma(s + 3, dg[:13])
                elif s == 5:
                    k = 0
                    for kind, j in [("K", 0), ("V", 0), ("K", 1), ("V", 1), ("K", 2), ("K", 3)]:
                        self.kv_dma(kind, j, [g + 8 + 4 * k, g + 9 + 4 * k])
                        k += 1
            if n == 4:
                self.poll_issue(vr(vHv), dDBG, 0, ("at", g + 3))
            if n == 6:
                self.poll_check(vr(vHv + 1), ("at", g + 8))
            if n == 22:
                e(f"v_mov_b32 {vr(vHv)}, 0", ("at", g))
                self.poll_issue(vr(vHv), dWS, f"s{sCnt}", ("at", g + 3))
            if n == 25:
                self.poll_check(32, ("at", g + 8))
            if n == 26:
                e(f"v_and_b32 {vr(vHv)}, 31, {vr(vL)}", ("at", g))
                e(f"v_lshlrev_b32 {vr(vHv)}, 4, {vr(vHv)}", ("at", g))
                e(f"s_lshl_b32 s{sT0}, s{sTb}, 9", ("at", g + 1))
                e(f"s_add_u32 s{sT0}, s{sT0}, {STATS}", ("at", g + 2))
                e(f"s_xor_b32 s{sT1}, s{sT0}, 512", ("at", g + 3))
                e(f"buffer_load_dwordx4 {vr(vSt, 4)}, {vr(vHv)}, {sd(dWS)}, s{sT0} offen sc1", ("at", g + 6))
                e(f"buffer_load_dwordx4 {vr(vSt + 4, 4)}, {vr(vHv)}, {sd(dWS)}, s{sT1} offen sc1", ("at", g + 7))
            A = [vr(vA0 + 4 * p, 4)] + [ar(16 * p + 4 * (q - 1), 4) for q in (1, 2, 3)]
            B = [ar(32 + 8 * p + 4 * b, 4) for b in range(2)]
            for q in range(4):
                for b in range(2):
                    d = vr(vQ + (2 * q + b) * 16, 16)
                    self.mfma(d, A[q], B[b], "0" if n == 0 else None)
            self.mfma(vr(vGa, 16), ar(16 * p + 12, 4), B[0], "0" if n == 0 else None)
            self.colsum(vA0 + 4 * p, vCs, vCs + 1, vT, ("st", "cs", g, g + 8))
            if ks == 2:
                self.colsum(vC1, vCs + 2, vCs + 3, vT + 2, ("st", "cs1", g, g + 17))
        self.stamp("qmain")
        P.mark("qepi")
        t = vT
        e(f"v_add_f32 {vr(vCs)}, {vr(vCs)}, {vr(vCs + 1)}")
        e(f"v_add_f32 {vr(vCs + 2)}, {vr(vCs + 2)}, {vr(vCs + 3)}")
        self.halfsum(vCs, t)
        self.halfsum(vCs + 2, t + 1)
        P.tag("cs", L_SCR, L_SCR + 1024)
        e(f"v_and_b32 {vr(t + 2)}, 31, {vr(vL)}")
        e(f"v_lshlrev_b32 {vr(t + 2)}, 2, {vr(t + 2)}")
        e(f"v_add_u32 {vr(t + 2)}, {L_SCR}, {vr(t + 2)}")
        e(f"s_lshl_b32 s{sT0}, s{sW}, 7")
        e(f"v_add_u32 {vr(t + 3)}, s{sT0}, {vr(t + 2)}")
        e(f"ds_write_b32 {vr(t + 3)}, {vr(vCs)}", w="cs")
        e(f"ds_write_b32 {vr(t + 3)}, {vr(vCs + 2)} offset:512", w="cs")
        for q in (1, 2, 3):
            e(f"v_xor_b32 {vr(t + 3 + q)}, {q * 128}, {vr(t + 3)}")
        P.barrier(pub=["cs"])
        for q in range(4):
            e(f"ds_read_b32 {vr(t + 8 + q)}, {vr(t + 3 + q)}", r="cs")
        for q in range(4):
            e(f"ds_read_b32 {vr(vCs + q)}, {vr(t + 2)} offset:{512 + 128 * q}", r="cs")
        self.kv_dma("V", 2, None)
        e(f"s_lshl_b32 s{sT4}, s{sCb}, 6")
        self.w64_voff(1024, sT4, None)
        self.w64_dma("w2", dW2, 1024, L_W2, 0, None)
        self.mk_mfrag(vG + 20, vSt, t)
        self.mk_mfrag(vG + 24, vSt + 4, t)
        e(f"v_add_f32 {vr(vCs)}, {vr(vCs)}, {vr(vCs + 1)}")
        e(f"v_add_f32 {vr(vCs + 2)}, {vr(vCs + 2)}, {vr(vCs + 3)}")
        e(f"v_add_f32 {vr(vCs)}, {vr(vCs)}, {vr(vCs + 2)}")
        self.mk_cfrag(vG + 16, vCs, t)
        for q in range(4):
            self.mk_cfrag(vG + 4 * q, t + 8 + q, t)
        self.mfma(vr(vGa, 16), vr(vG + 16, 4), vr(vG + 20, 4))
        for q in range(4):
            for b in range(2):
                self.mfma(vr(vQ + (2 * q + b) * 16, 16), vr(vG + 4 * q, 4), vr(vG + 20 + 4 * b, 4))
        self.gelu(vGa, 16, vSt + 2, vA0, t)
        e(f"s_lshl_b32 s{sT0}, s{sTb}, 15")
        e(f"s_lshl_b32 s{sT1}, s{sCb}, 11")
        e(f"s_add_u32 s{sT0}, s{sT0}, s{sT1}")
        self.h_st = [e(f"buffer_store_dwordx4 {vr(vA0 + 4 * i, 4)}, {vr(vL16)}, {sd(dH)}, s{sT0} offen offset:{i * 1024} sc1")
                     for i in range(2)]
        sc = 128 ** -0.5 * LOG2E
        e(f"v_mul_f32 {vr(t)}, {fhex(sc)}, {vr(vSt + 1)}")
        e(f"v_mul_f32 {vr(t + 1)}, {fhex(sc)}, {vr(vSt + 5)}")
        for tl in range(8):
            b = tl & 1
            for r in range(0, 16, 2):
                a = vQ + tl * 16 + r
                e(f"v_mul_f32 {vr(a)}, {vr(a)}, {vr(t + b)}")
                e(f"v_mul_f32 {vr(a + 1)}, {vr(a + 1)}, {vr(t + b)}")
                e(f"v_cvt_pk_bf16_f32 {vr(vQ + tl * 8 + r // 2)}, {vr(a)}, {vr(a + 1)}")
        self.stamp("qepi")

    def k_reads(self, j, gaps):
        ops = []
        for n in range(8):
            pos = ("at", gaps[n]) if gaps else None
            ops.append(self.e(f"ds_read_b128 {ar(128 + 4 * n, 4)}, {vr(vKa + n)} offset:{(j % 4) * 8 * K1}", pos, r=f"K{j}"))
        return ops

    def v_read(self, j, ks, db, gap):
        return self.trpair("a", 160 + 16 * ks + 4 * db, vVa + db, (j % 3) * 8 * K1 + ks * 4096, 1024, f"V{j}", ("at", gap))

    def qk(self, b):
        for n in range(8):
            self.mfma(vr(vS + 16 * b, 16), ar(128 + 4 * n, 4), vr(vQ + (2 * (n >> 1) + b) * 8 + 4 * (n & 1), 4), "0" if n == 0 else None)

    def sm(self, j, b, after, dl):
        e = self.e
        pos = ("st", "sm", after, dl)
        S = vS + 16 * b
        Pd = vP + 16 * (j & 1) + 8 * b
        e(f"v_exp_f32 {vr(S)}, {vr(S)}", pos)
        for r in range(16):
            if r < 15:
                e(f"v_exp_f32 {vr(S + r + 1)}, {vr(S + r + 1)}", pos)
            e(f"v_add_f32 {vr(vLs + 2 * b + (r & 1))}, {vr(vLs + 2 * b + (r & 1))}, {vr(S + r)}", pos)
            if r & 1:
                e(f"v_cvt_pk_bf16_f32 {vr(Pd + r // 2)}, {vr(S + r - 1)}, {vr(S + r)}", pos)

    def attention(self):
        P, e = self.P, self.e
        JG = self.o["JG2"]
        P.barrier(pub=["K0", "V0", "K1"], vm=self.h_st)
        e(f"s_add_u32 s{sT0}, s{sCnt}, {C_H * 128}")
        self.signal(sT0)
        kr = self.k_reads(0, None)
        P.mark("attn")
        g = P.here()
        G = {}
        for j in range(-1, 16):
            for name in ("q0", "p0", "q1", "p1", "g2"):
                if name[0] == "q" and j == 15 or name[0] == "p" and j == -1:
                    continue
                if name == "g2" and not (JG <= j < JG + 4):
                    continue
                G[(j, name)] = g
                g += 8
        self.G = G
        end = g
        vwait = None
        for j in range(-1, 16):
            if j < 15:
                g = G[(j, "q0")]
                if j == -1:
                    vr_ = []
                    for n in range(8):
                        vr_ += self.v_read(0, n >> 2, n & 3, g + n)
                    vwait = vr_
                self.extras(j, "q0", g)
                self.qk(0)
                self.sm(j + 1, 0, g + 8 + 2, G.get((j + 1, "q0"), G[(j + 1, "p0")]) - 1)
            if j >= 0:
                g = G[(j, "p0")]
                P.wait(("at", g - 1), lg=vwait)
                self.extras(j, "p0", g)
                self.pv(j, 0, None)
            if j < 15:
                g = G[(j, "q1")]
                pub = ([f"K{j + 2}"] if 1 < j + 2 < 16 else []) + ([f"V{j + 1}"] if j >= 0 else [])
                done = [f"K{j + 1}"] + ([f"V{j}"] if j >= 0 else [])
                x = self.bar_extras(j)
                P.barrier(("at", g - 1), pub=pub + x["pub"], done=done + x["done"], vm=x["vm"])
                self.after_bar(j, g)
                self.qk(1)
                if j + 2 < 16:
                    kr = self.k_reads(j + 2, [g + n for n in range(8)])
                    nq = G[(j + 1, "q0")]
                    P.wait(("at", nq - 1), lg=kr)
                if j + 5 < 16:
                    self.kv_dma("K", j + 5, [g + 3, g + 4])
                if j >= 0 and j + 3 < 16:
                    self.kv_dma("V", j + 3, [g + 6, g + 7])
                self.sm(j + 1, 1, g + 8 + 2, G.get((j + 1, "q1"), G[(j + 1, "p1")]) - 1)
            if j >= 0:
                g = G[(j, "p1")]
                vwait = self.pv(j, 1, g if j < 15 else None)
            if (j, "g2") in G:
                self.g2_group(j - JG, G[(j, "g2")])
        self.stamp("attn")

    def pv(self, j, b, rgap):
        ops = []
        for n in range(8):
            ks, db = n >> 2, n & 3
            self.mfma(ar((2 * db + b) * 16, 16), ar(160 + 16 * ks + 4 * db, 4), vr(vP + 16 * (j & 1) + 8 * b + 4 * ks, 4),
                      "0" if (j == 0 and ks == 0) else None)
            if rgap is not None:
                ops += self.v_read(j + 1, ks, db, rgap + n)
        return ops

    def bar_extras(self, j):
        JG = self.o["JG2"]
        x = dict(pub=[], done=[], vm=[])
        if j == JG - 1:
            x["pub"].append("w2")
        if j == JG + 4:
            x["done"].append("w2")
        if j == JG + 6:
            x["vm"] += self.x1_st
        if j == 14:
            x["pub"] += ["w3_0", "w3_1", "w3_2"]
        return x

    def after_bar(self, j, g):
        e = self.e
        JG = self.o["JG2"]
        if j == JG + 6:
            e(f"s_lshl_b32 s{sT0}, s{sPar}, 7", ("at", g))
            e(f"s_add_u32 s{sT0}, s{sT0}, s{sCnt}", ("at", g))
            e(f"s_add_u32 s{sT0}, s{sT0}, {C_X1 * 128}", ("at", g + 1))
            self.signal(sT0, ("at", g + 2))
        if j == 14:
            self.wo_voff(("st", "wov", g - 16, g - 2))
            self.wo_dma(0, L_K, [g + 2, g + 3, g + 4, g + 5, g + 6, g + 7, g + 18, g + 19])

    def extras(self, j, name, g):
        P, e = self.P, self.e
        JG = self.o["JG2"]
        t = vT
        if name == "q0" and j == 0:
            pos = ("st", "w3v", g, g + 6)
            e(f"s_mul_i32 s{sT3}, s{sCb}, 3", pos)
            e(f"s_lshl_b32 s{sT4}, s{sCb}, 1", pos)
            e(f"s_add_u32 s{sT4}, s{sT4}, 11", pos)
            e(f"s_cmp_lt_u32 s{sCb}, 11", ("at", g + 3))
            e(f"s_cselect_b32 s{sT4}, s{sT3}, s{sT4}", ("at", g + 3))
            e(f"s_lshl_b32 s{sT4}, s{sT4}, 6", ("at", g + 4))
            self.w64_voff(2752, sT4, ("st", "w3v2", g + 5, g + 15))
        if name == "q0" and j in (1, 2):
            self.w64_dma(f"w3_{j - 1}", dW3, 2752, L_W3[j - 1], (j - 1) * 64, [g + 2 * n + 1 for n in range(8)])
        if name == "q0" and j == JG + 5:
            self.w64_dma("w3_2", dW3, 2752, L_W3[2], 128, [g + 2 * n + 1 for n in range(8)])
        if name == "q0" and j == JG - 2:
            pos = ("st", "hp", g, g + 12)
            e(f"s_lshl_b32 s{sT0}, s{sPar}, 1", pos)
            e(f"s_add_u32 s{sT0}, s{sT0}, s{sR}", pos)
            e(f"s_sub_u32 s{sT0}, s{sT0}, 1", pos)
            e(f"s_lshl_b32 s{sT1}, s{sT0}, 12", pos)
            e(f"s_cmp_lt_u32 s{sT0}, 8", ("at", g + 5))
            e(f"s_cselect_b32 s{sT1}, s{sT1}, s{sCnt}", ("at", g + 5))
            pos = ("st", "hp2", g + 6, g + 12)
            e(f"v_and_b32 {vr(t)}, 1, {vr(vL)}", pos)
            e(f"v_mov_b32 {vr(t + 1)}, s{sCnt}", pos)
            e(f"v_cmp_eq_u32 vcc, 0, {vr(t)}", pos)
            e(f"v_mov_b32 {vr(t + 2)}, s{sT1}", pos)
            e(f"v_add_u32 {vr(t + 1)}, {C_H * 128}, {vr(t + 1)}", pos)
            e(f"v_add_u32 {vr(t + 2)}, {C_H * 128}, {vr(t + 2)}", pos)
            e(f"v_cndmask_b32 {vr(t + 4)}, {vr(t + 2)}, {vr(t + 1)}, vcc", pos)
            self.poll_issue(vr(t + 4), dWS, 0, ("at", g + 14))
        if name == "p0" and j == JG - 2:
            pos = ("st", "hv", g, g + 23)
            e(f"s_lshl_b32 s{sT0}, s{sTb}, 5", pos)
            e(f"v_and_b32 {vr(t)}, 31, {vr(vL)}", pos)
            e(f"v_add_u32 {vr(t)}, s{sT0}, {vr(t)}", pos)
            e(f"v_and_b32 {vr(t + 1)}, 32, {vr(vL)}", pos)
            for gi, dlt in enumerate((-1, 1, -2, 2)):
                e(f"v_add_u32 {vr(t + 2)}, {dlt}, {vr(t)}", pos)
                e(f"v_and_or_b32 {vr(t + 3)}, {vr(t + 2)}, 31, {vr(t + 1)}", pos)
                e(f"v_ashrrev_i32 {vr(t + 2)}, 5, {vr(t + 2)}", pos)
                e(f"v_lshlrev_b32 {vr(t + 3)}, 4, {vr(t + 3)}", pos)
                e(f"v_lshl_add_u32 {vr(vHv + gi)}, {vr(t + 2)}, 15, {vr(t + 3)}", pos)
            e(f"v_lshrrev_b32 {vr(t + 1)}, 1, {vr(t + 1)}", pos)
            e(f"v_lshl_add_u32 {vr(t + 5)}, {vr(t)}, 10, {vr(t + 1)}", pos)
            e(f"s_lshl_b32 s{sT0}, s{sCb}, 6", ("at", g + 24))
            e(f"buffer_load_dwordx4 {vr(vXt, 4)}, {vr(t + 5)}, {sd(dX)}, s{sT0} offen", ("at", g + 25))
            e(f"buffer_load_dwordx4 {vr(vXt + 4, 4)}, {vr(t + 5)}, {sd(dX)}, s{sT0} offen offset:32", ("at", g + 26))
        if name == "q0" and j == JG - 1:
            self.poll_check(32, ("at", g + 3))
        if name == "q0" and JG - 1 <= j < JG + 3:
            q = j - (JG - 1)
            gg = g + (5 if q == 0 else 1)
            for n in range(8):
                if n % 4 == 0:
                    e(f"s_mov_b32 s{sT2}, {(2 * q + (n >> 2)) * 4096}", ("at", gg + n - 1))
                e(f"buffer_load_dwordx4 {ar(192 + 32 * (q & 1) + 4 * n, 4)}, {vr(vHv + q)}, {sd(dH)}, s{sT2} offen offset:{(n & 3) * 1024} sc1",
                  ("at", gg + n))
        if name == "p0" and JG <= j < JG + 4:
            q = j - JG
            ops = []
            for n in range(8):
                ops += self.trpair("v", vG + 4 * n, vW64 + 1, (8 * q + n) * 1024, 256, "w2", ("at", g + n))
            P.wait(("at", g + 15), lg=ops)
        if name == "q0" and j == JG + 4:
            self.g2_epilogue(g + 2, g + 56)
        if name == "q0" and j == 13:
            e(f"s_lshl_b32 s{sT2}, s{sPar}, 7", ("at", g))
            e(f"s_add_u32 s{sT2}, s{sT2}, s{sCnt}", ("at", g + 1))
            e(f"s_add_u32 s{sT2}, s{sT2}, {C_X1 * 128}", ("at", g + 2))
            e(f"v_mov_b32 {vr(t + 4)}, 0", ("at", g + 2))
            self.poll_issue(vr(t + 4), dWS, f"s{sT2}", ("at", g + 12))
        if name == "q0" and j == 14:
            self.poll_check(16, ("at", g + 1))
            self.x1_loads(0, 16, 192, [g + 3 + n for n in range(12)] + [g + 24 + n for n in range(4)])

    def x1_loads(self, k0, k1, areg, gaps):
        e = self.e
        for n, ks in enumerate(range(k0, k1)):
            at = (lambda d=0: ("at", gaps[n] + d)) if gaps else (lambda d=0: None)
            if n == 0:
                e(f"s_lshl_b32 s{sT3}, s{sTb}, 15", at(-1))
                e(f"s_add_u32 s{sT3}, s{sT3}, {X1 + ks * 1024}", at(-1))
            elif n % 4 == 0:
                e(f"s_add_u32 s{sT3}, s{sT3}, 4096", at())
            e(f"buffer_load_dwordx4 {ar(areg + 4 * n, 4)}, {vr(vL16)}, {sd(dWS)}, s{sT3} offen offset:{(n & 3) * 1024} sc1", at())

    def g2_group(self, q, g):
        for n in range(8):
            self.mfma(vr(vGa, 16), vr(vG + 4 * n, 4), ar(192 + 32 * (q & 1) + 4 * n, 4), "0" if (q == 0 and n == 0) else None)

    def g2_epilogue(self, g, dl):
        e = self.e
        pos = ("st", "g2e", g, dl)
        t = vT + 6
        e(f"v_mul_f32 {vr(t)}, {vr(vSt)}, {vr(vSt + 1)}", pos)
        for r in range(8):
            a = vGa + 2 * r
            e(f"v_lshlrev_b32 {vr(t + 1)}, 16, {vr(vXt + r)}", pos)
            e(f"v_and_b32 {vr(t + 2)}, 0xffff0000, {vr(vXt + r)}", pos)
            e(f"v_fma_f32 {vr(t + 1)}, {vr(t + 1)}, {vr(vSt + 1)}, -{vr(t)}", pos)
            e(f"v_fma_f32 {vr(t + 2)}, {vr(t + 2)}, {vr(vSt + 1)}, -{vr(t)}", pos)
            e(f"v_add_f32 {vr(a)}, {vr(a)}, {vr(t + 1)}", pos)
            e(f"v_add_f32 {vr(a + 1)}, {vr(a + 1)}, {vr(t + 2)}", pos)
            e(f"v_cvt_pk_bf16_f32 {vr(vA0 + r)}, {vr(a)}, {vr(a + 1)}", pos)
            if r == 0:
                e(f"v_add_f32 {vr(vC1)}, {vr(a)}, {vr(a + 1)}", pos)
                e(f"v_mul_f32 {vr(vC1 + 1)}, {vr(a)}, {vr(a)}", pos)
            else:
                e(f"v_add_f32 {vr(vC1)}, {vr(vC1)}, {vr(a)}", pos)
                e(f"v_fmac_f32 {vr(vC1 + 1)}, {vr(a)}, {vr(a)}", pos)
                e(f"v_add_f32 {vr(vC1)}, {vr(vC1)}, {vr(a + 1)}", pos)
            e(f"v_fmac_f32 {vr(vC1 + 1)}, {vr(a + 1)}, {vr(a + 1)}", pos)
        self.halfsum(vC1, t + 1, pos)
        self.halfsum(vC1 + 1, t + 2, pos)
        e(f"v_cmp_gt_u32 vcc, 32, {vr(vL)}", pos)
        e(f"v_lshlrev_b32 {vr(t + 1)}, 3, {vr(vL)}", pos)
        e(f"v_mov_b32 {vr(t + 2)}, {hex(OOB)}", pos)
        e(f"v_cndmask_b32 {vr(t + 1)}, {vr(t + 2)}, {vr(t + 1)}, vcc", pos)
        e(f"s_lshl_b32 s{sT0}, s{sTb}, 15", pos)
        e(f"s_lshl_b32 s{sT1}, s{sCb}, 11", pos)
        e(f"s_add_u32 s{sT0}, s{sT0}, s{sT1}", pos)
        e(f"s_add_u32 s{sT0}, s{sT0}, {X1}", pos)
        st = [e(f"buffer_store_dwordx4 {vr(vA0 + 4 * i, 4)}, {vr(vL16)}, {sd(dWS)}, s{sT0} offen offset:{i * 1024} sc1", pos)
              for i in range(2)]
        e(f"s_lshl_b32 s{sT0}, s{sR}, 1", pos)
        e(f"s_add_u32 s{sT0}, s{sT0}, s{sPar}", pos)
        e(f"s_lshl_b32 s{sT0}, s{sT0}, 4", pos)
        e(f"s_add_u32 s{sT0}, s{sT0}, s{sCb}", pos)
        e(f"s_lshl_b32 s{sT0}, s{sT0}, 2", pos)
        e(f"s_add_u32 s{sT0}, s{sT0}, s{sW}", pos)
        e(f"s_lshl_b32 s{sT0}, s{sT0}, 8", pos)
        e(f"s_add_u32 s{sT0}, s{sT0}, {X1ST}", pos)
        st.append(e(f"buffer_store_dwordx2 {vr(vC1, 2)}, {vr(t + 1)}, {sd(dWS)}, s{sT0} offen sc1", pos))
        self.x1_st = st

    def wo_voff(self, pos):
        e = self.e
        e(f"s_lshl_b32 s{sT5}, s{sKq}, 20", pos)
        e(f"s_lshl_b32 s{sT6}, s{sW}, 15", pos)
        e(f"s_add_u32 s{sT5}, s{sT5}, s{sT6}", pos)
        e(f"s_lshl_b32 s{sT6}, s{sCt}, 8", pos)
        e(f"s_add_u32 s{sT5}, s{sT5}, s{sT6}", pos)
        e(f"v_and_b32 {vr(vDt)}, 0xff, {vr(vVd)}", pos)
        e(f"v_lshrrev_b32 {vr(vDt + 1)}, 4, {vr(vL)}", pos)
        e(f"v_lshl_add_u32 {vr(vDt)}, {vr(vDt + 1)}, 10, {vr(vDt)}", pos)
        e(f"v_add_u32 {vr(vDt)}, s{sT5}, {vr(vDt)}", pos)
        for i in (1, 2, 3):
            e(f"v_add_u32 {vr(vDt + i)}, {i * 3072}, {vr(vDt)}", pos)

    def wo_dma(self, i, base, gaps):
        P, e = self.P, self.e
        tg = P.tag(f"wo{i}", base, base + 32 * K1)
        at = (lambda n, d=0: ("at", self.add(gaps[n], d))) if gaps else (lambda n, d=0: None)
        for n in range(8):
            if n == 0:
                e(f"s_add_u32 s{sT6}, s{sHd}, {i}", at(n, -2))
                e(f"s_and_b32 s{sT6}, s{sT6}, 7", at(n, -2))
                e(f"s_lshl_b32 s{sT6}, s{sT6}, 17", at(n, -1))
            if n == 4:
                e(f"s_add_u32 s{sT6}, s{sT6}, 0x4000", at(n))
            if n % 4 == 0:
                e(f"s_add_u32 m0, s{sMx}, {base + (n >> 2) * 4096}", at(n, -1) if n == 0 else at(n))
            e(f"buffer_load_dwordx4 {vr(vDt + (n & 3))}, {sd(dWO)}, s{sT6} offen offset:{(n & 3) * 1024} lds", at(n), w=tg)

    def o_epilogue(self):
        P, e = self.P, self.e
        P.mark("oepi")
        t = vT
        self.x1_loads(16, 32, 128, None)
        for b in range(2):
            e(f"v_add_f32 {vr(vLs + 2 * b)}, {vr(vLs + 2 * b)}, {vr(vLs + 2 * b + 1)}")
        for b in range(2):
            self.halfsum(vLs + 2 * b, t + b)
        for b in range(2):
            e(f"v_rcp_f32 {vr(vLs + 2 * b)}, {vr(vLs + 2 * b)}")
        e(f"s_lshl_b32 s{sT0}, s{sTb}, 18")
        e(f"s_lshl_b32 s{sT1}, s{sHd}, 13")
        e(f"s_add_u32 s{sT0}, s{sT0}, s{sT1}")
        e(f"s_add_u32 s{sT0}, s{sT0}, {OO}")
        e(f"s_xor_b32 s{sT1}, s{sT0}, 0x40000")
        self.o_st = []
        for b in range(2):
            for db in range(4):
                src = (2 * db + b) * 16
                dst = vQ + b * 32 + db * 8
                for r in range(0, 16, 2):
                    tt = t + 4 + (r & 2)
                    e(f"v_accvgpr_read_b32 {vr(tt)}, {ar(src + r)}")
                    e(f"v_accvgpr_read_b32 {vr(tt + 1)}, {ar(src + r + 1)}")
                    e(f"v_mul_f32 {vr(tt)}, {vr(tt)}, {vr(vLs + 2 * b)}")
                    e(f"v_mul_f32 {vr(tt + 1)}, {vr(tt + 1)}, {vr(vLs + 2 * b)}")
                    e(f"v_cvt_pk_bf16_f32 {vr(dst + r // 2)}, {vr(tt)}, {vr(tt + 1)}")
                if db == 2:
                    e(f"s_add_u32 s{sT0 + b}, s{sT0 + b}, 4096")
                for i in range(2):
                    self.o_st.append(e(f"buffer_store_dwordx4 {vr(dst + 4 * i, 4)}, {vr(vL16)}, {sd(dWS)}, s{sT0 + b} offen offset:{((2 * db + i) & 3) * 1024} sc1"))
        self.stamp("oepi")

    def g3(self):
        P, e = self.P, self.e
        t = vT
        acc = vG
        fa = vS
        fc = vS + 24
        cs = vP
        xs = vP + 8
        e(f"v_and_b32 {vr(t)}, 31, {vr(vL)}")
        e(f"v_lshlrev_b32 {vr(t)}, 3, {vr(t)}")
        e(f"v_lshrrev_b32 {vr(t + 1)}, 5, {vr(vL)}")
        e(f"v_lshl_add_u32 {vr(t)}, {vr(t + 1)}, 13, {vr(t)}")
        e(f"s_lshl_b32 s{sT2}, s{sR}, 1")
        e(f"s_add_u32 s{sT2}, s{sT2}, s{sPar}")
        e(f"s_lshl_b32 s{sT2}, s{sT2}, 6")
        e(f"s_add_u32 s{sT2}, s{sT2}, s{sW}")
        e(f"s_lshl_b32 s{sT2}, s{sT2}, 8")
        e(f"s_add_u32 s{sT2}, s{sT2}, {X1ST}")
        e(f"s_add_u32 s{sT3}, s{sT2}, 4096")
        for i in range(8):
            e(f"buffer_load_dwordx2 {vr(xs + 2 * i, 2)}, {vr(t)}, {sd(dWS)}, s{sT2 if i < 4 else sT3} offen offset:{(i & 3) * 1024} sc1")
        for i in range(6):
            e(f"v_mov_b32 {vr(cs + i)}, 0")
        e(f"v_add_u32 {vr(t + 2)}, s{sMx}, {vr(vW64)}")
        e(f"v_add_u32 {vr(t + 3)}, s{sMx}, {vr(vW64 + 1)}")

        def rd(n, gaps):
            ops = []
            for c in range(3):
                pos = ("at", gaps[c]) if gaps else None
                ops += self.trpair("v", fa + 12 * (n & 1) + 4 * c, vW64 + (c == 2), (L_W3[c] if c < 2 else 0) + n * 1024, 256, f"w3_{c}", pos)
            return ops
        rd(0, None)
        P.mark("g3")
        g0 = P.here()
        for n in range(32):
            g = g0 + 3 * n
            if n < 31:
                P.wait(("at", g + 2), lg=rd(n + 1, [g, g, g + 1]))
            if n == 12:
                P.barrier(("at", g + 2), vm=self.o_st)
                e(f"s_lshl_b32 s{sT0}, s{sKq}, 7", ("at", g))
                e(f"s_add_u32 s{sT0}, s{sT0}, s{sCnt}", ("at", g + 1))
                e(f"s_add_u32 s{sT0}, s{sT0}, {C_O * 128}", ("at", g + 1))
                self.signal(sT0, ("at", g + 3))
            breg = 192 + 4 * n if n < 16 else 128 + 4 * (n - 16)
            for c in range(3):
                self.mfma(vr(acc + 16 * c, 16), vr(fa + 12 * (n & 1) + 4 * c, 4), ar(breg, 4), "0" if n == 0 else None)
        for m in range(24):
            c, k8 = m % 3, m // 3
            gg = g0 + 4 * m
            self.trpair("v", fc, t + 2 + (c == 2), (L_W3[c] if c < 2 else 0) + k8 * 1024, 256, f"w3_{c}", ("at", gg))
            self.colsum(fc, cs + 2 * c, cs + 2 * c + 1, t + 4, ("st", "cs3", gg + 1, min(gg + 3, g0 + 95)))
        P.mark("g3epi")
        for c in range(3):
            e(f"v_add_f32 {vr(cs + 2 * c)}, {vr(cs + 2 * c)}, {vr(cs + 2 * c + 1)}")
        for c in range(3):
            self.halfsum(cs + 2 * c, t + 4 + c)
        P.tag("cs3", L_SCR + 1024, L_SCR + 3072)
        e(f"v_and_b32 {vr(t + 2)}, 31, {vr(vL)}")
        e(f"v_lshlrev_b32 {vr(t + 2)}, 2, {vr(t + 2)}")
        e(f"v_add_u32 {vr(t + 2)}, {L_SCR + 1024}, {vr(t + 2)}")
        e(f"s_lshl_b32 s{sT0}, s{sW}, 7")
        e(f"v_add_u32 {vr(t + 3)}, s{sT0}, {vr(t + 2)}")
        for c in range(3):
            e(f"ds_write_b32 {vr(t + 3)}, {vr(cs + 2 * c)} offset:{512 * c}", w="cs3")
        P.barrier(pub=["cs3", "wo0"], done=["w3_0", "w3_1", "w3_2"])
        for c in range(3):
            for q in range(4):
                e(f"ds_read_b32 {vr(fa + 4 * c + q)}, {vr(t + 2)} offset:{512 * c + 128 * q}", r="cs3")
        self.wo_dma(1, 0, None)
        self.wo_dma(2, 32 * K1, None)
        self.wo_dma(3, 96 * K1, None)
        for i in range(1, 8):
            e(f"v_add_f32 {vr(xs)}, {vr(xs)}, {vr(xs + 2 * i)}")
            e(f"v_add_f32 {vr(xs + 1)}, {vr(xs + 1)}, {vr(xs + 2 * i + 1)}")
        self.halfsum(xs, t + 4)
        self.halfsum(xs + 1, t + 5)
        e(f"v_mul_f32 {vr(xs)}, {fhex(1.0 / 512)}, {vr(xs)}")
        e(f"v_mul_f32 {vr(xs + 1)}, {fhex(1.0 / 512)}, {vr(xs + 1)}")
        e(f"v_fma_f32 {vr(xs + 1)}, -{vr(xs)}, {vr(xs)}, {vr(xs + 1)}")
        e(f"v_max_f32 {vr(xs + 1)}, 0, {vr(xs + 1)}")
        e(f"v_add_f32 {vr(xs + 1)}, {fhex(1e-5)}, {vr(xs + 1)}")
        e(f"v_rsq_f32 {vr(xs + 1)}, {vr(xs + 1)}")
        self.mk_mfrag(xs + 4, xs, t + 4)
        for c in range(3):
            e(f"v_add_f32 {vr(fa + 4 * c)}, {vr(fa + 4 * c)}, {vr(fa + 4 * c + 1)}")
            e(f"v_add_f32 {vr(fa + 4 * c + 2)}, {vr(fa + 4 * c + 2)}, {vr(fa + 4 * c + 3)}")
            e(f"v_add_f32 {vr(cs + c)}, {vr(fa + 4 * c)}, {vr(fa + 4 * c + 2)}")
        for c in range(3):
            self.mk_cfrag(fa + 12 + 4 * c, cs + c, t + 4)
        for c in range(3):
            self.mfma(vr(acc + 16 * c, 16), vr(fa + 12 + 4 * c, 4), vr(xs + 4, 4))
        e(f"s_mul_i32 s{sT0}, s{sTb}, {86 * 1024}")
        e(f"s_lshl_b32 s{sT1}, s{sT4}, 5")
        e(f"s_add_u32 s{sT0}, s{sT0}, s{sT1}")
        e(f"s_add_u32 s{sT0}, s{sT0}, {H3}")
        e(f"s_add_u32 s{sT1}, s{sT0}, 4096")
        e(f"s_cmp_lt_u32 s{sCb}, 11")
        e(f"s_cselect_b32 s{sT2}, 0, {hex(OOB)}")
        e(f"v_or_b32 {vr(t + 8)}, s{sT2}, {vr(vL16)}")
        self.h3_st = []
        for c in range(3):
            self.gelu(acc + 16 * c, 16, xs + 1, vQ + 32 + 8 * c, t + 4)
            for i in range(2):
                n = 2 * c + i
                self.h3_st.append(e(f"buffer_store_dwordx4 {vr(vQ + 32 + 8 * c + 4 * i, 4)}, {vr(vL16 if c < 2 else t + 8)}, {sd(dWS)}, "
                                    f"s{sT0 if n < 4 else sT1} offen offset:{(n & 3) * 1024} sc1"))
        self.stamp("g3")

    G4SLOT = [96 * K1, 128 * K1, 64 * K1, 0, 32 * K1]

    def g4_dma(self, c, gaps):
        P, e = self.P, self.e
        base = self.G4SLOT[c % 5]
        tg = P.tag(f"g4_{c}", base, base + 32 * K1)
        at = (lambda n, d=0: ("at", gaps[n] + d)) if gaps else (lambda n, d=0: None)
        for ee in range(2):
            n = 4 * ee
            e(f"s_lshl_b32 s{sT6}, s{sW}, 1", at(n, -1))
            e(f"s_add_u32 s{sT6}, s{sT6}, {8 * c + ee}", at(n, -1))
            e(f"s_lshl_b32 s{sT5}, s{sT6}, 14", at(n, -1))
            e(f"s_add_u32 m0, s{sMx}, {base + ee * 4096}", at(n))
            e(f"s_lshl_b32 s{sT6}, s{sT6}, 10", at(n))
            e(f"buffer_load_dwordx4 {vr(vHv)}, {sd(dW4)}, s{sT5} offen lds", at(n), w=tg)
            e(f"buffer_load_dwordx4 {vr(vHv + 1)}, {sd(dW4)}, s{sT5} offen offset:1024 lds", at(n + 1), w=tg)
            e(f"buffer_load_dwordx4 {vr(vHv + 2)}, {sd(dWS)}, s{sT6} offen offset:2048 sc1 lds", at(n + 2), w=tg)
            e(f"buffer_load_dwordx4 {vr(vHv + 3)}, {sd(dWS)}, s{sT6} offen offset:3072 sc1 lds", at(n + 3), w=tg)

    def oproj(self):
        P, e = self.P, self.e
        t = vT
        acc = vG
        fa = vS
        wa = vKa
        slots = [64 * K1, 0, 32 * K1, 96 * K1, 128 * K1, 64 * K1, 0, 32 * K1]
        for c in range(4):
            e(f"v_add_u32 {vr(t + c)}, {-L_V & 0xffffffff}, {vr(vVa + c)}")
        for c in range(4):
            e(f"v_mov_b32 {vr(wa + 8 + c)}, {vr(vVa + c)}")
        for c in range(4):
            e(f"v_mov_b32 {vr(wa + c)}, {vr(t + c)}")
            e(f"v_add_u32 {vr(wa + 4 + c)}, 0x10000, {vr(t + c)}")
        e(f"v_lshrrev_b32 {vr(t)}, 3, {vr(vL)}")
        e(f"v_bfe_u32 {vr(t + 1)}, {vr(vL)}, 4, 1")
        e(f"v_lshlrev_b32 {vr(t + 1)}, 2, {vr(t + 1)}")
        e(f"v_and_b32 {vr(t + 2)}, 7, {vr(vL)}")
        e(f"v_xor_b32 {vr(t + 1)}, {vr(t + 1)}, {vr(t + 2)}")
        e(f"v_lshlrev_b32 {vr(t + 1)}, 4, {vr(t + 1)}")
        e(f"v_lshl_add_u32 {vr(t)}, {vr(t)}, 10, {vr(t + 1)}")
        e(f"s_and_b32 s{sT0}, s{sKq}, 1")
        e(f"s_lshl_b32 s{sT0}, s{sT0}, 7")
        e(f"s_lshl_b32 s{sT1}, s{sCt}, 8")
        e(f"s_add_u32 s{sT0}, s{sT0}, s{sT1}")
        e(f"v_add_u32 {vr(vHv)}, s{sT0}, {vr(t)}")
        e(f"v_add_u32 {vr(vHv + 1)}, 7168, {vr(vHv)}")
        e(f"s_lshr_b32 s{sT0}, s{sKq}, 1")
        e(f"s_lshl_b32 s{sT0}, s{sT0}, 2")
        e(f"s_lshl_b32 s{sT1}, s{sR}, 3")
        e(f"s_add_u32 s{sT0}, s{sT0}, s{sT1}")
        e(f"s_add_u32 s{sRot}, s{sT0}, s{sPar}")
        e(f"s_mul_i32 s{sT0}, s{sRot}, {86 * 1024}")
        e(f"s_add_u32 s{sT0}, s{sT0}, {H3 - 2048}")
        e(f"v_add_u32 {vr(vHv + 2)}, s{sT0}, {vr(vL16)}")
        e(f"v_add_u32 {vr(vHv + 3)}, {2 * 86 * 1024 - 1024}, {vr(vHv + 2)}")
        P.barrier(vm=self.h3_st, done=["cs3"])
        e(f"s_lshl_b32 s{sT0}, s{sPar}, 7")
        e(f"s_add_u32 s{sT0}, s{sT0}, s{sCnt}")
        e(f"s_add_u32 s{sKc}, s{sT0}, {C_H3 * 128}")
        self.signal(sKc)
        self.wo_dma(4, 128 * K1, None)
        e(f"s_lshl_b32 s{sT0}, s{sKq}, 7")
        e(f"s_add_u32 s{sT0}, s{sT0}, s{sCnt}")
        e(f"s_add_u32 s{sT0}, s{sT0}, {C_O * 128}")
        e(f"v_mov_b32 {vr(t + 4)}, 0")
        self.poll_issue(vr(t + 4), dWS, f"s{sT0}")
        self.poll_check(8)
        self.stamp("owait")
        e(f"s_lshl_b32 s{sOx}, s{sTb}, 18")
        e(f"s_lshl_b32 s{sT1}, s{sKq}, 16")
        e(f"s_add_u32 s{sOx}, s{sOx}, s{sT1}")
        e(f"s_add_u32 s{sOx}, s{sOx}, {OO}")

        def bload(m, gap):
            i, n = 1 + m // 8, m % 8
            at = (lambda d=0: ("at", gap + d)) if gap is not None else (lambda d=0: None)
            if n == 0:
                e(f"s_add_u32 s{sOq}, s{sHd}, {i}", at(-2))
                e(f"s_and_b32 s{sOq}, s{sOq}, 7", at(-2))
                e(f"s_lshl_b32 s{sOq}, s{sOq}, 13", at(-1))
                e(f"s_add_u32 s{sOq}, s{sOq}, s{sOx}", at(-1))
            if n == 4:
                e(f"s_add_u32 s{sOq}, s{sOq}, 4096", at(-1))
            e(f"buffer_load_dwordx4 {ar(4 * m, 4)}, {vr(vL16)}, {sd(dWS)}, s{sOq} offen offset:{(n & 3) * 1024} sc1", at())
        NPRE = 16
        for m in range(NPRE):
            bload(m, None)

        def rd(n, gaps):
            i, ks = n >> 3, n & 7
            base = slots[i]
            ops = []
            for c in range(4):
                pos = ("at", gaps[c]) if gaps else None
                ops += self.trpair("v", fa + 16 * (n & 1) + 4 * c, wa + 4 * (base >> 16) + c, (base & 0xffff) + ks * 4096, 1024, f"wo{i}", pos)
            return ops
        rd(0, None)
        P.mark("oproj")
        g0 = P.here()
        for n in range(64):
            i, ks = n >> 3, n & 7
            g = g0 + 4 * n
            if ks == 7:
                P.barrier(("at", g), pub=[f"wo{i + 1}"] if i < 7 else ["g4_0"], done=[f"wo{i}"])
                dg = [g + 3 + 4 * k for k in range(8)]
                if i + 5 < 8:
                    self.wo_dma(i + 5, slots[i + 5], dg)
                elif i < 7:
                    self.g4_dma(i - 3, dg)
            if n < 63:
                P.wait(("at", g + 3), lg=rd(n + 1, [g, g, g + 1, g + 2] if ks != 7 else [g + 1, g + 1, g + 2, g + 2]))
            if NPRE + n < 56:
                bload(NPRE + n, g + 2)
            if n == 18:
                self.poll_issue(vr(t + 4), dWS, f"s{sKc}", ("at", g + 1))
            if n == 28:
                self.poll_check(16, ("at", g + 1))
            B = vr(vQ + 4 * ks, 4) if i == 0 else ar(4 * (n - 8), 4)
            for c in range(4):
                self.mfma(vr(acc + 16 * c, 16), vr(fa + 16 * (n & 1) + 4 * c, 4), B, "0" if n == 0 else None)
        self.stamp("oproj")
        P.mark("sst")
        self.g4_dma(4, None)
        e(f"s_lshl_b32 s{sT0}, s{sR}, 1")
        e(f"s_add_u32 s{sT0}, s{sT0}, s{sPar}")
        e(f"s_lshl_b32 s{sT0}, s{sT0}, 2")
        e(f"s_add_u32 s{sT0}, s{sT0}, s{sCt}")
        e(f"s_lshl_b32 s{sO1}, s{sT0}, 18")
        e(f"s_add_u32 s{sO1}, s{sO1}, {SP}")
        e(f"s_lshl_b32 s{sT0}, s{sKq}, 2")
        e(f"s_add_u32 s{sT0}, s{sT0}, s{sW}")
        e(f"s_lshl_b32 s{sT0}, s{sT0}, 14")
        e(f"s_add_u32 s{sT0}, s{sT0}, s{sO1}")
        self.s_st = []
        for c in range(4):
            if c:
                e(f"s_add_u32 s{sT0}, s{sT0}, 4096")
            for qd in range(4):
                self.s_st.append(e(f"buffer_store_dwordx4 {vr(acc + 16 * c + 4 * qd, 4)}, {vr(vL16)}, {sd(dWS)}, s{sT0} offen offset:{qd * 1024} sc1"))

    def g4(self):
        P, e = self.P, self.e
        t = vT
        acc = vQ
        fr = vS
        aa, ab = vKa, vKa + 3
        sp = vQ + 16
        e(f"v_bfe_u32 {vr(t)}, {vr(vW64)}, 6, 4")
        e(f"v_and_b32 {vr(t + 1)}, 63, {vr(vW64)}")
        e(f"v_lshl_add_u32 {vr(t + 1)}, {vr(t)}, 7, {vr(t + 1)}")
        e(f"v_bfe_u32 {vr(t)}, {vr(t)}, 1, 1")
        e(f"s_and_b32 s{sT0}, s{sW}, 1")
        e(f"v_xor_b32 {vr(t)}, s{sT0}, {vr(t)}")
        e(f"v_lshl_add_u32 {vr(aa)}, {vr(t)}, 6, {vr(t + 1)}")
        e(f"s_lshr_b32 s{sT1}, s{sW}, 1")
        e(f"s_lshl_b32 s{sT2}, s{sT1}, 10")
        e(f"s_add_u32 s{sT2}, s{sT2}, 2048")
        e(f"v_add_u32 {vr(ab)}, s{sT2}, {vr(vL16)}")
        for k in (1, 2):
            e(f"v_add_u32 {vr(aa + k)}, {k * 0x10000}, {vr(aa)}")
            e(f"v_add_u32 {vr(ab + k)}, {k * 0x10000}, {vr(ab)}")
        e(f"s_lshl_b32 s{sT1}, s{sT1}, 1")
        e(f"s_add_u32 s{sTk}, s{sRot}, s{sT1}")
        e(f"s_and_b32 s{sT1}, s{sKq}, 1")
        e(f"s_lshl_b32 s{sT1}, s{sT1}, 1")
        e(f"s_add_u32 s{sT1}, s{sT1}, s{sT0}")
        e(f"s_lshl_b32 s{sTv}, s{sCt}, 2")
        e(f"s_add_u32 s{sTv}, s{sTv}, s{sT1}")
        e(f"s_lshl_b32 s{sT1}, s{sT1}, 12")
        e(f"s_add_u32 s{sO1}, s{sO1}, s{sT1}")
        e(f"s_and_b32 s{sT1}, s{sKq}, 2")
        e(f"s_lshr_b32 s{sT2}, s{sW}, 1")
        e(f"s_add_u32 s{sT1}, s{sT1}, s{sT2}")
        e(f"s_lshl_b32 s{sT1}, s{sT1}, 14")
        e(f"s_add_u32 s{sO1}, s{sO1}, s{sT1}")
        e(f"v_and_b32 {vr(t)}, 31, {vr(vL)}")
        e(f"v_lshrrev_b32 {vr(t + 1)}, 5, {vr(vL)}")
        e(f"v_lshlrev_b32 {vr(t + 1)}, 4, {vr(t + 1)}")
        e(f"v_lshl_add_u32 {vr(vDt)}, {vr(t)}, 10, {vr(t + 1)}")
        e(f"s_lshl_b32 s{sOx}, s{sTk}, 15")
        e(f"s_lshl_b32 s{sT1}, s{sTv}, 6")
        e(f"s_add_u32 s{sT2}, s{sOx}, s{sT1}")
        e(f"s_lshl_b32 s{sT1}, s{sTv}, 11")
        e(f"s_add_u32 s{sT3}, s{sOx}, s{sT1}")
        e(f"s_mov_b32 s{sOx}, s{sT2}")
        e(f"s_add_u32 s{sT3}, s{sT3}, {X1}")
        for i in range(2):
            e(f"buffer_load_dwordx4 {vr(vXt + 4 * i, 4)}, {vr(vDt)}, {sd(dX)}, s{sOx} offen offset:{32 * i}")
            e(f"buffer_load_dwordx4 {vr(vSt + 4 * i, 4)}, {vr(vL16)}, {sd(dWS)}, s{sT3} offen offset:{1024 * i} sc1")
        e(f"s_lshl_b32 s{sT0}, s{sPar}, 2")
        e(f"s_add_u32 s{sT0}, s{sT0}, s{sCt}")
        e(f"s_lshl_b32 s{sT0}, s{sT0}, 7")
        e(f"s_add_u32 s{sT0}, s{sT0}, s{sCnt}")
        e(f"s_add_u32 s{sKc}, s{sT0}, {C_S * 128}")
        LA = 3

        def rd(n, gap):
            c, k8 = n >> 3, n & 7
            base = self.G4SLOT[c % 5]
            pos = ("at", gap) if gap is not None else None
            f = fr + 8 * (n & 3)
            ops = self.trpair("v", f, aa + (base >> 16), (base & 0xffff) + k8 * 4096, 512, f"g4_{c}", pos)
            ops.append(e(f"ds_read_b128 {vr(f + 4, 4)}, {vr(ab + (base >> 16))} offset:{(base & 0xffff) + k8 * 4096}", pos, r=f"g4_{c}"))
            return ops
        reads = {n: rd(n, None) for n in range(LA)}
        P.mark("g4")
        g0 = P.here()
        SIG = 4
        for n in range(86):
            g = g0 + n
            m = n + LA
            if m < 86:
                if m % 8 == 0:
                    c = m >> 3
                    P.barrier(("at", g), pub=[f"g4_{c}"], done=[f"g4_{c - 1}"], vm=self.s_st if c == SIG else [])
                    if c == SIG:
                        self.signal(sKc, ("at", g + 1))
                    if c + 4 < 11:
                        self.g4_dma(c + 4, [g + 1 + k for k in range(8)])
                reads[m] = rd(m, g)
            if n + 1 < 86:
                P.wait(("at", g), lg=reads[n + 1])
            if n == 66:
                self.poll_issue(vr(t + 4), dWS, f"s{sKc}", ("at", g))
            f = fr + 8 * (n & 3)
            self.mfma(vr(acc, 16), vr(f, 4), vr(f + 4, 4), "0" if n == 0 else None)
        P.mark("final")
        self.poll_check(4)
        self.stamp("g4")
        sp = vG
        for src in range(4):
            if src:
                e(f"s_add_u32 s{sO1}, s{sO1}, 0x10000")
            for qd in range(4):
                e(f"buffer_load_dwordx4 {vr(sp + 16 * src + 4 * qd, 4)}, {vr(vL16)}, {sd(dWS)}, s{sO1} offen offset:{qd * 1024} sc1")
        for r in range(8):
            a = acc + 2 * r
            tt = t + 6 + 2 * (r & 1)
            e(f"v_lshlrev_b32 {vr(tt)}, 16, {vr(vSt + r)}")
            e(f"v_and_b32 {vr(tt + 1)}, 0xffff0000, {vr(vSt + r)}")
            e(f"v_add_f32 {vr(a)}, {vr(a)}, {vr(tt)}")
            e(f"v_add_f32 {vr(a + 1)}, {vr(a + 1)}, {vr(tt + 1)}")
            e(f"v_mul_f32 {vr(tt)}, {fhex(-LOG2E)}, {vr(a)}")
            e(f"v_mul_f32 {vr(tt + 1)}, {fhex(-LOG2E)}, {vr(a + 1)}")
            e(f"v_exp_f32 {vr(tt)}, {vr(tt)}")
            e(f"v_exp_f32 {vr(tt + 1)}, {vr(tt + 1)}")
            e(f"v_add_f32 {vr(tt)}, 1.0, {vr(tt)}")
            e(f"v_add_f32 {vr(tt + 1)}, 1.0, {vr(tt + 1)}")
            e(f"v_rcp_f32 {vr(tt)}, {vr(tt)}")
            e(f"v_rcp_f32 {vr(tt + 1)}, {vr(tt + 1)}")
            e(f"v_mul_f32 {vr(a)}, {vr(a)}, {vr(tt)}")
            e(f"v_mul_f32 {vr(a + 1)}, {vr(a + 1)}, {vr(tt + 1)}")
        for r in range(16):
            e(f"v_add_f32 {vr(sp + r)}, {vr(sp + r)}, {vr(sp + 16 + r)}")
        for r in range(16):
            e(f"v_add_f32 {vr(sp + 32 + r)}, {vr(sp + 32 + r)}, {vr(sp + 48 + r)}")
        for r in range(8):
            a = acc + 2 * r
            tt = t + 6 + 2 * (r & 1)
            e(f"v_add_f32 {vr(sp + 2 * r)}, {vr(sp + 2 * r)}, {vr(sp + 32 + 2 * r)}")
            e(f"v_add_f32 {vr(sp + 2 * r + 1)}, {vr(sp + 2 * r + 1)}, {vr(sp + 33 + 2 * r)}")
            e(f"v_lshlrev_b32 {vr(tt)}, 16, {vr(vXt + r)}")
            e(f"v_and_b32 {vr(tt + 1)}, 0xffff0000, {vr(vXt + r)}")
            e(f"v_fmac_f32 {vr(tt)}, {vr(sp + 2 * r)}, {vr(a)}")
            e(f"v_fmac_f32 {vr(tt + 1)}, {vr(sp + 2 * r + 1)}, {vr(a + 1)}")
            e(f"v_cvt_pk_bf16_f32 {vr(vS + r)}, {vr(tt)}, {vr(tt + 1)}")
            if r & 3 == 3:
                e(f"buffer_store_dwordx4 {vr(vS + r - 3, 4)}, {vr(vDt)}, {sd(dOUT)}, s{sOx} offen offset:{32 * (r >> 2)}")
        self.stamp("end")

    def dump_stamps(self):
        if not self.prof:
            return
        e = self.e
        e("s_waitcnt lgkmcnt(0)")
        e(f"s_lshl_b32 s{sT0}, s2, 2")
        e(f"s_add_u32 s{sT0}, s{sT0}, s{sW}")
        e(f"s_lshl_b32 s{sT0}, s{sT0}, 6")
        e(f"s_add_u32 s{sT0}, s{sT0}, {PROF}")
        e(f"v_mov_b32 {vr(vT)}, 0")
        for k in range(self.nstamp):
            e(f"v_mov_b32 {vr(vT + 1)}, s{STAMPS[k]}")
            e(f"buffer_store_dword {vr(vT + 1)}, {vr(vT)}, {sd(dWS)}, s{sT0} offen offset:{4 * k}")

    def build(self):
        P = self.P
        steps = [("pro", self.prologue), ("qproj", self.qproj), ("attn", self.attention), ("oepi", self.o_epilogue),
                 ("g3", self.g3), ("oproj", self.oproj), ("g4", self.g4)]
        for name, fn in steps:
            fn()
            if self.stop == name:
                break
        self.dump_stamps()
        P.b("s_waitcnt vmcnt(0)")
        P.schedule()
        P.verify()
        P.finalize()
        body = P.text(comments=True)
        nbytes = sum(i.size for i in P.final)
        code_bytes = (nbytes + 255) // 256 * 256
        body = body.replace("CODE_BYTES", str(code_bytes))
        hdr = open(os.path.join(os.path.dirname(os.path.abspath(__file__)), "header.txt")).read()
        return f"""{hdr}; @launch grid=(256,1,1) block=(256,1,1) lds=163840
.amdgcn_target "amdgcn-amd-amdhsa--gfx950"
.text
.globl {KNAME}
.p2align 8
.type {KNAME},@function
{KNAME}:
{body}L_end:
    s_endpgm
{''.join(P.ool)}
.section .rodata,"a"
.p2align 6
.amdhsa_kernel {KNAME}
  .amdhsa_next_free_vgpr 512
  .amdhsa_next_free_sgpr 102
  .amdhsa_accum_offset 256
  .amdhsa_group_segment_fixed_size 0
  .amdhsa_kernarg_size 104
  .amdhsa_user_sgpr_count 2
  .amdhsa_user_sgpr_kernarg_segment_ptr 1
  .amdhsa_system_sgpr_workgroup_id_x 1
  .amdhsa_float_denorm_mode_32 3
.end_amdhsa_kernel
"""


if __name__ == "__main__":
    import argparse, json
    ap = argparse.ArgumentParser()
    ap.add_argument("-o", default="recurrent_scan__sliding_block_cached__mixer_s_mlp__prompt.s")
    ap.add_argument("--prof", action="store_true")
    ap.add_argument("--stop")
    ap.add_argument("--opts", default="{}")
    a = ap.parse_args()
    g = Gen(a.prof, a.stop, json.loads(a.opts))
    txt = g.build()
    open(a.o, "w").write(txt)
    g.P.estimate([m for m in g.P.marks])
    if a.prof:
        print("stamps:", g.stamp_names)
```

```python
import math, struct, sys, os, re
sys.path.insert(0, os.path.dirname(os.path.abspath(__file__)))
from asmgen import Prog

KNAME = "recurrent_scan__sliding_block_cached__mixer_s_mlp__prompt_kernel"
K1 = 1024
OOB = 0x80000000

CNT = 0x0
STATS = 0x10000
X1ST = 0x20000
PROF = 0x80000
H = 0x100000
X1 = 0x300000
H3 = 0x500000
OO = 0x1000000
SP = 0x2000000
WS_BYTES = 0x3000000
C_ST, C_H, C_X1, C_H3, C_O, C_S = 0, 1, 2, 4, 6, 10

sR, sHd, sW, sPar, sCb, sKq, sCt, sRot, sTb = 3, 4, 5, 6, 7, 8, 9, 10, 11
sOx, sOq, sO1, sKc = 12, 13, 14, 15
sMx, sMq, sM1, sMk, sMv = 16, 17, 18, 19, 20
sTk, sTv, sCnt = 21, 22, 23
sT0, sT1, sSpin, sT2, sT3, sT4, sT5, sT6 = 24, 25, 26, 27, 28, 29, 30, 31
dX, dK, dV, dWQ, dWO, dW1, dW2, dW3, dW4, dOUT, dDBG, dWS, dH, dCODE = [32 + 4 * i for i in range(14)]
STAMPS = list(range(84, 97, 2)) + [0, 72, 74, 44, 46, 52, 54]

vL = 0
vKa = 1
vVa = 9
vKd = 13
vVd = 15
vLs = 16
vSt = 20
vXt = 28
vHv = 36
vDt = 40
vW64 = 44
vL16 = 46
vPoll = 47
vT = 48
vG = 64
vA0 = 96
vC1 = 104
vCs = 108
vGa = 112
vQ = 128
vS = 192
vP = 224
vSig = 63
vOne = 62
vGc = 61

L_X, L_WQ, L_W1, L_SCR = 0, 96 * K1, 144 * K1, 156 * K1
L_K, L_V = 64 * K1, 128 * K1
L_W3 = [0, 32 * K1, 96 * K1]
L_W2 = 96 * K1

LOG2E = 1.4426950408889634


def fhex(x):
    return "0x%08x" % struct.unpack("<I", struct.pack("<f", x))[0]


def vr(b, n=1):
    return f"v{b}" if n == 1 else f"v[{b}:{b + n - 1}]"


def ar(b, n=1):
    return f"a{b}" if n == 1 else f"a[{b}:{b + n - 1}]"


def sd(b):
    return f"s[{b}:{b + 3}]"


class Gen:
    def __init__(self, prof=False, stop=None, opts=None):
        self.P = Prog()
        self.prof = prof
        self.stop = stop
        self.o = dict(JG2=5, pfcode=True)
        if opts:
            self.o.update(opts)
        self.nstamp = 0
        self.stamp_names = []

    def e(self, t, pos=None, r=None, w=None):
        return self.P.emit(t, pos, r, w)

    def stamp(self, name, pos=None):
        if not self.prof:
            return
        s = STAMPS[self.nstamp]
        self.nstamp += 1
        self.stamp_names.append(name)
        self.e(f"s_memrealtime s[{s}:{s + 1}]" if name.startswith("rt") else f"s_memtime s[{s}:{s + 1}]", pos)

    def poll_issue(self, voff, srd, soff, pos=None):
        self._poll = f"buffer_load_dword {vr(vPoll)}, {voff}, {sd(srd)}, {soff} offen sc1"
        return self.e(self._poll, pos)

    def poll_check(self, target, pos=None):
        P = self.P
        slow, back = P.label("spin"), P.label("back")
        cmp = f"v_cmp_gt_u32 vcc, {target}, {vr(vPoll)}"
        self.e(cmp, pos)
        br = self.e(f"s_cbranch_vccnz {slow}", pos)
        br.wr = ["scc", f"s{sSpin}"]
        i = self.e(f"{back}:", pos)
        i.kind = "branch" if pos is not None else "label"
        i.cost = 0
        i.label = True
        P.ool.append(f"""{slow}:
    s_mov_b32 s{sSpin}, 0
{slow}_l:
    s_sleep 1
    {self._poll}
    s_add_u32 s{sSpin}, s{sSpin}, 1
    s_cmp_gt_u32 s{sSpin}, 0x80000
    s_waitcnt vmcnt(0)
    s_cbranch_scc1 {back}
    {cmp}
    s_cbranch_vccnz {slow}_l
    s_branch {back}
""")

    def signal(self, idx_s, pos=None):
        return self.e(f"buffer_atomic_add {vr(vOne)}, {vr(vSig)}, {sd(dWS)}, s{idx_s} offen sc1", pos)

    def mfma(self, d, a, b, c=None):
        return self.P.b(f"v_mfma_f32_32x32x16_bf16 {d}, {a}, {b}, {c if c is not None else d}")

    def trpair(self, dst_kind, dst, addr, off, jstep, tag, pos0, pos1=None):
        f = vr if dst_kind == "v" else ar
        a = self.e(f"ds_read_b64_tr_b16 {f(dst, 2)}, {vr(addr)} offset:{off}", pos0, r=tag)
        b = self.e(f"ds_read_b64_tr_b16 {f(dst + 2, 2)}, {vr(addr)} offset:{off + jstep}", pos1 or pos0, r=tag)
        return [a, b]

    def colsum(self, frag, acc0, acc1, t0, pos):
        for r in range(4):
            self.e(f"v_lshlrev_b32 {vr(t0)}, 16, {vr(frag + r)}", pos)
            self.e(f"v_and_b32 {vr(t0 + 1)}, 0xffff0000, {vr(frag + r)}", pos)
            self.e(f"v_add_f32 {vr(acc0)}, {vr(acc0)}, {vr(t0)}", pos)
            self.e(f"v_add_f32 {vr(acc1)}, {vr(acc1)}, {vr(t0 + 1)}", pos)

    def halfsum(self, v, t, pos=None):
        self.e(f"v_mov_b32 {vr(t)}, {vr(v)}", pos)
        self.e(f"v_permlane32_swap_b32 {vr(v)}, {vr(t)}", pos)
        self.e(f"v_add_f32 {vr(v)}, {vr(v)}, {vr(t)}", pos)

    def mk_cfrag(self, dst, c, t, pos=None):
        self.e(f"v_cvt_pk_bf16_f32 {vr(dst)}, {vr(c)}, {vr(c)}", pos)
        self.e(f"v_mov_b32 {vr(dst + 2)}, 0", pos)
        self.e(f"v_and_b32 {vr(t)}, 0xffff0000, {vr(dst)}", pos)
        self.e(f"v_mov_b32 {vr(dst + 3)}, 0", pos)
        self.e(f"v_sub_f32 {vr(t)}, {vr(c)}, {vr(t)}", pos)
        self.e(f"v_cvt_pk_bf16_f32 {vr(dst + 1)}, {vr(t)}, {vr(t)}", pos)

    def mk_mfrag(self, dst, m, t, pos=None):
        self.e(f"v_cmp_gt_u32 vcc, 32, {vr(vL)}", pos)
        self.e(f"v_sub_f32 {vr(t)}, 0, {vr(m)}", pos)
        self.e(f"v_mov_b32 {vr(dst + 2)}, 0", pos)
        self.e(f"v_cndmask_b32 {vr(t)}, 0, {vr(t)}, vcc", pos)
        self.e(f"v_cvt_pk_bf16_f32 {vr(dst)}, {vr(t)}, {vr(t)}", pos)
        self.e(f"v_mov_b32 {vr(dst + 3)}, 0", pos)
        self.e(f"v_and_b32 {vr(dst)}, 0xffff0000, {vr(dst)}", pos)
        self.e(f"v_sub_f32 {vr(dst)}, {vr(t)}, {vr(dst)}", pos)
        self.e(f"v_cvt_pk_bf16_f32 {vr(dst)}, {vr(t)}, {vr(dst)}", pos)
        self.e(f"v_mov_b32 {vr(dst + 1)}, {vr(dst)}", pos)

    def gelu(self, acc, n, scale, dst, t, pos=None):
        c0 = -2.0 * LOG2E * math.sqrt(2.0 / math.pi)
        for i in range(0, n, 2):
            y0, y1 = acc + i, acc + i + 1
            a, b = t + (i & 2), t + (i & 2) + 1
            self.e(f"v_mul_f32 {vr(y0)}, {vr(y0)}, {vr(scale)}", pos)
            self.e(f"v_mul_f32 {vr(y1)}, {vr(y1)}, {vr(scale)}", pos)
            self.e(f"v_mul_f32 {vr(a)}, {vr(y0)}, {vr(y0)}", pos)
            self.e(f"v_mul_f32 {vr(b)}, {vr(y1)}, {vr(y1)}", pos)
            self.e(f"v_fmaak_f32 {vr(a)}, {vr(a)}, {vr(vGc)}, {fhex(c0)}", pos)
            self.e(f"v_fmaak_f32 {vr(b)}, {vr(b)}, {vr(vGc)}, {fhex(c0)}", pos)
            self.e(f"v_mul_f32 {vr(a)}, {vr(a)}, {vr(y0)}", pos)
            self.e(f"v_mul_f32 {vr(b)}, {vr(b)}, {vr(y1)}", pos)
            self.e(f"v_exp_f32 {vr(a)}, {vr(a)}", pos)
            self.e(f"v_exp_f32 {vr(b)}, {vr(b)}", pos)
            self.e(f"v_add_f32 {vr(a)}, 1.0, {vr(a)}", pos)
            self.e(f"v_add_f32 {vr(b)}, 1.0, {vr(b)}", pos)
            self.e(f"v_rcp_f32 {vr(a)}, {vr(a)}", pos)
            self.e(f"v_rcp_f32 {vr(b)}, {vr(b)}", pos)
            self.e(f"v_mul_f32 {vr(y0)}, {vr(y0)}, {vr(a)}", pos)
            self.e(f"v_mul_f32 {vr(y1)}, {vr(y1)}, {vr(b)}", pos)
            self.e(f"v_cvt_pk_bf16_f32 {vr(dst + i // 2)}, {vr(y0)}, {vr(y1)}", pos)

    def prologue(self):
        e = self.e
        P = self.P
        e("s_cmp_ge_u32 s2, 0x100")
        e("s_cbranch_scc1 L_end")
        if self.prof:
            e("s_memrealtime s[98:99]")
            e("s_memtime s[100:101]")
        for d, off in [(dX, 0), (dWQ, 24), (dW1, 48), (dWS, 96), (dK, 8), (dV, 16), (dWO, 32), (dW2, 56), (dW3, 64),
                       (dW4, 72), (dOUT, 80), (dDBG, 88)]:
            e(f"s_load_dwordx2 s[{d}:{d + 1}], s[0:1], {off}")
        e(f"s_load_dwordx2 s[{dH}:{dH + 1}], s[0:1], 96")
        e(f"v_lshrrev_b32 {vr(vT)}, 6, v0")
        e(f"v_lshlrev_b32 {vr(vT + 1)}, 4, v0")
        e(f"v_readfirstlane_b32 s{sW}, {vr(vT)}")
        e(f"v_and_b32 {vr(vL)}, 63, v0")
        if self.o["pfcode"]:
            e(f"s_getpc_b64 s[{dCODE}:{dCODE + 1}]")
            e(f"s_and_b32 s{dCODE}, s{dCODE}, 0xffffff00")
            e(f"s_mov_b32 s{dCODE + 2}, CODE_BYTES")
            e(f"s_mov_b32 s{dCODE + 3}, 0x20000")
            e(f"s_lshr_b32 s{sT0}, s2, 3")
            e(f"s_lshl_b32 s{sT0}, s{sT0}, 12")
            e(f"buffer_load_dwordx4 {ar(252, 4)}, {vr(vT + 1)}, {sd(dCODE)}, s{sT0} offen")
        e(f"s_and_b32 s{sT0}, s2, 7")
        e(f"s_lshr_b32 s{sT1}, s2, 3")
        e(f"s_and_b32 s{sR}, s{sT0}, 1")
        e(f"s_lshl_b32 s{sR}, s{sR}, 2")
        e(f"s_and_b32 s{sT2}, s{sT1}, 3")
        e(f"s_add_u32 s{sR}, s{sR}, s{sT2}")
        e(f"s_lshr_b32 s{sKq}, s{sT0}, 1")
        e(f"s_lshr_b32 s{sT1}, s{sT1}, 2")
        e(f"s_lshl_b32 s{sHd}, s{sKq}, 3")
        e(f"s_add_u32 s{sHd}, s{sHd}, s{sT1}")
        e(f"s_and_b32 s{sPar}, s{sHd}, 1")
        e(f"s_lshr_b32 s{sCb}, s{sHd}, 1")
        e(f"s_lshr_b32 s{sCt}, s{sT1}, 1")
        e(f"s_lshl_b32 s{sT0}, s{sR}, 1")
        e(f"s_add_u32 s{sRot}, s{sT0}, s{sHd}")
        e(f"s_lshl_b32 s{sTb}, s{sR}, 3")
        e(f"s_lshl_b32 s{sT0}, s{sW}, 1")
        e(f"s_add_u32 s{sTb}, s{sTb}, s{sT0}")
        e(f"s_add_u32 s{sTb}, s{sTb}, s{sPar}")
        e(f"s_lshl_b32 s{sCnt}, s{sR}, 12")
        for d, n in [(dX, 2097152), (dWQ, 4194304), (dW1, 524288), (dWS, WS_BYTES), (dK, 131072), (dV, 131072),
                     (dWO, 4194304), (dW2, 524288), (dW3, 1409024), (dW4, 1409024), (dOUT, 2097152), (dDBG, 256),
                     (dH, 2097152)]:
            e(f"s_mov_b32 s{d + 2}, {n}")
            e(f"s_mov_b32 s{d + 3}, 0x20000")
        e(f"s_lshl_b32 s{sMx}, s{sW}, 13")
        e(f"s_lshl_b32 s{sMq}, s{sW}, 12")
        e(f"s_add_u32 s{sMq}, s{sMq}, {L_WQ}")
        e(f"s_lshl_b32 s{sM1}, s{sW}, 10")
        e(f"s_add_u32 s{sM1}, s{sM1}, {L_W1}")
        e(f"s_lshl_b32 s{sMk}, s{sW}, 11")
        e(f"s_add_u32 s{sMv}, s{sMk}, {L_V}")
        e(f"s_add_u32 s{sMk}, s{sMk}, {L_K}")
        l, t = vr(vL), vT
        e(f"v_lshlrev_b32 {vr(vL16)}, 4, {l}")
        e(f"v_lshrrev_b32 {vr(t)}, 4, {l}")
        e(f"v_lshrrev_b32 {vr(t + 1)}, 3, {l}")
        e(f"v_and_b32 {vr(t + 2)}, 7, {l}")
        e(f"v_xor_b32 {vr(t + 2)}, {vr(t + 2)}, {vr(t)}")
        e(f"v_lshlrev_b32 {vr(t + 2)}, 4, {vr(t + 2)}")
        e(f"v_lshl_add_u32 {vr(t + 2)}, {vr(t + 1)}, 10, {vr(t + 2)}")
        e(f"s_lshl_b32 s{sT0}, s{sR}, 18")
        e(f"s_lshl_b32 s{sT1}, s{sW}, 16")
        e(f"s_add_u32 s{sT0}, s{sT0}, s{sT1}")
        e(f"s_lshl_b32 s{sT1}, s{sPar}, 15")
        e(f"s_add_u32 s{sT2}, s{sT0}, s{sT1}")
        e(f"s_xor_b32 s{sT1}, s{sT1}, 0x8000")
        e(f"s_add_u32 s{sT3}, s{sT0}, s{sT1}")
        e(f"v_add_u32 {vr(vG + 0)}, s{sT2}, {vr(t + 2)}")
        e(f"v_add_u32 {vr(vG + 4)}, s{sT3}, {vr(t + 2)}")
        for hi in (0, 4):
            e(f"v_xor_b32 {vr(vG + hi + 1)}, 64, {vr(vG + hi)}")
            e(f"v_add_u32 {vr(vG + hi + 2)}, {2 * 7168}, {vr(vG + hi)}")
            e(f"v_add_u32 {vr(vG + hi + 3)}, {3 * 7168}, {vr(vG + hi + 1)}")
            e(f"v_add_u32 {vr(vG + hi + 1)}, {7168}, {vr(vG + hi + 1)}")
        e(f"v_and_b32 {vr(t + 3)}, 15, {l}")
        e(f"v_lshlrev_b32 {vr(t + 4)}, 2, {vr(t)}")
        e(f"v_xor_b32 {vr(t + 4)}, {vr(t + 3)}, {vr(t + 4)}")
        e(f"v_lshlrev_b32 {vr(t + 4)}, 4, {vr(t + 4)}")
        e(f"s_lshl_b32 s{sT0}, s{sW}, 17")
        e(f"s_lshl_b32 s{sT1}, s{sHd}, 8")
        e(f"s_add_u32 s{sT0}, s{sT0}, s{sT1}")
        e(f"v_lshl_add_u32 {vr(vG + 8)}, {vr(t)}, 13, {vr(t + 4)}")
        e(f"v_add_u32 {vr(vG + 8)}, s{sT0}, {vr(vG + 8)}")
        for i in (1, 2, 3):
            e(f"v_add_u32 {vr(vG + 8 + i)}, {i * (32768 - 1024)}, {vr(vG + 8)}")
        e(f"v_lshrrev_b32 {vr(t + 5)}, 2, {l}")
        e(f"v_and_b32 {vr(t + 6)}, 3, {l}")
        e(f"v_lshlrev_b32 {vr(t + 7)}, 4, {vr(t + 6)}")
        e(f"v_lshl_add_u32 {vr(vG + 12)}, {vr(t + 5)}, 10, {vr(t + 7)}")
        e(f"s_lshl_b32 s{sT0}, s{sW}, 14")
        e(f"s_lshl_b32 s{sT1}, s{sCb}, 6")
        e(f"s_add_u32 s{sT0}, s{sT0}, s{sT1}")
        e(f"v_add_u32 {vr(vG + 12)}, s{sT0}, {vr(vG + 12)}")
        e(f"v_mov_b32 {vr(t + 8)}, {hex(OOB)}")
        e(f"s_or_b32 s{sT0}, s{sW}, s{sHd}")
        e(f"s_cmp_eq_u32 s{sT0}, 0")
        e(f"s_cselect_b32 s{sT0}, 18, 0")
        e(f"s_cselect_b32 s{sT2}, 1, 0")
        e(f"v_lshlrev_b32 {vr(t + 9)}, 7, {l}")
        e(f"v_cmp_gt_u32 vcc, s{sT0}, {l}")
        e(f"v_mov_b32 {vr(vOne)}, 0")
        e(f"s_cmp_eq_u32 s{sW}, 0")
        e(f"v_cndmask_b32 {vr(t + 9)}, {vr(t + 8)}, {vr(t + 9)}, vcc")
        e(f"s_cselect_b32 s{sT1}, 1, 0")
        e(f"v_cmp_gt_u32 vcc, s{sT2}, {l}")
        e(f"s_lshl_b32 s{sT3}, s{sR}, 2")
        e(f"v_mov_b32 {vr(t + 10)}, s{sT3}")
        e(f"v_cndmask_b32 {vr(t + 10)}, {vr(t + 8)}, {vr(t + 10)}, vcc")
        e(f"v_cmp_gt_u32 vcc, s{sT1}, {l}")
        e(f"s_lshl_b32 s{sT4}, s{sR}, 18")
        e(f"s_lshl_b32 s{sT5}, s{sHd}, 13")
        e(f"v_cndmask_b32 {vr(vSig)}, {vr(t + 8)}, 0, vcc")
        e(f"s_add_u32 s{sT4}, s{sT4}, s{sT5}")
        e(f"s_lshl_b32 s{sT5}, s{sW}, 11")
        e(f"s_add_u32 s{sT4}, s{sT4}, s{sT5}")
        e("s_waitcnt lgkmcnt(0)")
        self.stamp("start")
        if self.o.get("wsoff"):
            for d in (dWS, dH):
                e(f"s_add_u32 s{d}, s{d}, {self.o['wsoff']}")
                e(f"s_addc_u32 s{d + 1}, s{d + 1}, 0")
        zst = e(f"buffer_store_dword {vr(vOne)}, {vr(t + 9)}, {sd(dWS)}, s{sCnt} offen sc1")
        e(f"buffer_load_dwordx4 {vr(vS, 4)}, {vr(vL16)}, {sd(dX)}, s{sT4} offen")
        e(f"buffer_load_dwordx4 {vr(vS + 4, 4)}, {vr(vL16)}, {sd(dX)}, s{sT4} offen offset:1024")
        for s in range(3):
            self.q_dma(s, None)
        e(f"s_lshl_b32 s{sT0}, s{sHd}, 19")
        e(f"s_add_u32 s{sT0}, s{sT0}, {1536 * 256}")
        for d in (dK, dV):
            e(f"s_add_u32 s{d}, s{d}, s{sT0}")
            e(f"s_addc_u32 s{d + 1}, s{d + 1}, 0")
        e(f"s_add_u32 s{dH}, s{dH}, {H}")
        e(f"s_addc_u32 s{dH + 1}, s{dH + 1}, 0")
        e(f"v_lshrrev_b32 {vr(t + 11)}, 5, {l}")
        e(f"v_and_b32 {vr(t + 12)}, 31, {l}")
        e(f"v_bfe_u32 {vr(t + 13)}, {l}, 2, 2")
        e(f"v_and_b32 {vr(t + 1)}, 1, {l}")
        e(f"v_lshlrev_b32 {vr(t + 1)}, 4, {vr(t + 1)}")
        e(f"v_and_b32 {vr(t + 2)}, 2, {l}")
        e(f"v_lshl_or_b32 {vr(t + 1)}, {vr(t + 2)}, 2, {vr(t + 1)}")
        e(f"v_and_b32 {vr(t + 2)}, 16, {l}")
        e(f"v_lshl_or_b32 {vr(t + 1)}, {vr(t + 2)}, 1, {vr(t + 1)}")
        e(f"v_lshl_add_u32 {vr(t + 2)}, {vr(t + 11)}, 3, {vr(t + 13)}")
        e(f"v_lshl_add_u32 {vr(vW64)}, {vr(t + 2)}, 6, {vr(t + 1)}")
        e(f"v_add_u32 {vr(vW64 + 1)}, {96 * K1}, {vr(vW64)}")
        e(f"v_add_u32 {vr(vG + 25)}, {L_W1}, {vr(vW64)}")
        e(f"s_lshl_b32 s{sT0}, s{sW}, 10")
        e(f"v_add_u32 {vr(vG + 26)}, s{sT0}, {vr(vG + 25)}")
        e(f"v_lshl_add_u32 {vr(t + 2)}, {vr(t + 2)}, 8, {vr(t + 1)}")
        e(f"v_lshl_add_u32 {vr(t + 2)}, {vr(t + 13)}, 6, {vr(t + 2)}")
        e(f"v_add_u32 {vr(vVa)}, {L_V}, {vr(t + 2)}")
        e(f"s_lshl_b32 s{sT0}, s{sW}, 6")
        e(f"v_xor_b32 {vr(t + 2)}, s{sT0}, {vr(t + 2)}")
        e(f"v_add_u32 {vr(vG + 21)}, {L_WQ}, {vr(t + 2)}")
        for q in (1, 2, 3):
            e(f"v_xor_b32 {vr(vVa + q)}, {q * 64}, {vr(vVa)}")
            e(f"v_xor_b32 {vr(vG + 21 + q)}, {q * 64}, {vr(vG + 21)}")
        e(f"v_bfe_u32 {vr(t + 2)}, {l}, 1, 3")
        e(f"v_xor_b32 {vr(t + 2)}, {vr(t + 2)}, {vr(t + 11)}")
        e(f"v_lshlrev_b32 {vr(t + 2)}, 4, {vr(t + 2)}")
        e(f"v_lshl_add_u32 {vr(t + 2)}, {vr(t + 12)}, 7, {vr(t + 2)}")
        e(f"v_add_u32 {vr(vG + 13)}, s{sMx}, {vr(t + 2)}")
        for ks in (1, 2, 3):
            e(f"v_xor_b32 {vr(vG + 13 + ks)}, {ks * 32}, {vr(vG + 13)}")
        for ks in range(4):
            e(f"v_add_u32 {vr(vG + 17 + ks)}, 0x10000, {vr(vG + 13 + ks)}")
        e(f"v_and_b32 {vr(t + 2)}, 19, {l}")
        e(f"v_and_b32 {vr(t + 1)}, 4, {l}")
        e(f"v_lshl_or_b32 {vr(t + 2)}, {vr(t + 1)}, 1, {vr(t + 2)}")
        e(f"v_and_b32 {vr(t + 1)}, 8, {l}")
        e(f"v_lshrrev_b32 {vr(t + 1)}, 1, {vr(t + 1)}")
        e(f"v_or_b32 {vr(t + 2)}, {vr(t + 2)}, {vr(t + 1)}")
        e(f"v_and_b32 {vr(t + 1)}, 15, {vr(t + 2)}")
        e(f"v_xor_b32 {vr(t + 1)}, {vr(t + 1)}, {vr(t + 11)}")
        e(f"v_lshlrev_b32 {vr(t + 1)}, 4, {vr(t + 1)}")
        e(f"v_lshl_add_u32 {vr(t + 2)}, {vr(t + 2)}, 8, {vr(t + 1)}")
        e(f"v_xor_b32 {vr(t + 2)}, s{sT0}, {vr(t + 2)}")
        e(f"v_add_u32 {vr(vKa)}, {L_K}, {vr(t + 2)}")
        for n in range(1, 8):
            e(f"v_xor_b32 {vr(vKa + n)}, {n * 32}, {vr(vKa)}")
        e(f"s_lshl_b32 s{sT0}, s{sW}, 11")
        e(f"v_lshl_add_u32 {vr(vVd)}, {vr(t)}, 8, {vr(t + 4)}")
        e(f"v_add_u32 {vr(vVd)}, s{sT0}, {vr(vVd)}")
        e(f"s_and_b32 s{sT1}, s{sW}, 1")
        e(f"s_lshl_b32 s{sT1}, s{sT1}, 3")
        e(f"v_xor_b32 {vr(t + 1)}, {vr(t + 3)}, {vr(t)}")
        e(f"v_xor_b32 {vr(t + 1)}, s{sT1}, {vr(t + 1)}")
        e(f"v_lshlrev_b32 {vr(t + 1)}, 4, {vr(t + 1)}")
        e(f"v_lshl_add_u32 {vr(vKd)}, {vr(t)}, 8, {vr(t + 1)}")
        e(f"v_add_u32 {vr(vKd)}, s{sT0}, {vr(vKd)}")
        e(f"v_xor_b32 {vr(vKd + 1)}, 64, {vr(vKd)}")
        e(f"v_mov_b32 {vr(vGc)}, {fhex(-2.0 * LOG2E * math.sqrt(2.0 / math.pi) * 0.044715)}")
        for i in range(4):
            e(f"v_mov_b32 {vr(vCs + i)}, 0")
            e(f"v_mov_b32 {vr(vLs + i)}, 0")
        e(f"v_mov_b32 {vr(vOne)}, 1")
        P.wait(vm=[zst])
        e(f"buffer_store_dword {vr(vOne)}, {vr(t + 10)}, {sd(dDBG)}, 0 offen sc1")
        u = vP
        for rw in range(2):
            for r in range(4):
                e(f"v_lshlrev_b32 {vr(u + 8 * rw + 2 * r)}, 16, {vr(vS + 4 * rw + r)}")
                e(f"v_and_b32 {vr(u + 8 * rw + 2 * r + 1)}, 0xffff0000, {vr(vS + 4 * rw + r)}")
        a = vS + 8
        for rw in range(2):
            e(f"v_add_f32 {vr(a + rw)}, {vr(u + 8 * rw)}, {vr(u + 8 * rw + 1)}")
        for i in range(2, 8):
            for rw in range(2):
                e(f"v_add_f32 {vr(a + rw)}, {vr(a + rw)}, {vr(u + 8 * rw + i)}")
        self.allreduce2(a, a + 2)
        for rw in range(2):
            e(f"v_mul_f32 {vr(a + rw)}, {fhex(1.0 / 512)}, {vr(a + rw)}")
        b = vS + 12
        for i in range(8):
            for rw in range(2):
                e(f"v_sub_f32 {vr(u + 8 * rw + i)}, {vr(u + 8 * rw + i)}, {vr(a + rw)}")
        for rw in range(2):
            e(f"v_mul_f32 {vr(b + rw)}, {vr(u + 8 * rw)}, {vr(u + 8 * rw)}")
        for i in range(1, 8):
            for rw in range(2):
                e(f"v_fmac_f32 {vr(b + rw)}, {vr(u + 8 * rw + i)}, {vr(u + 8 * rw + i)}")
        self.allreduce2(b, a + 2)
        e(f"v_cmp_eq_u32 vcc, 0, {l}")
        e(f"v_mov_b32 {vr(u + 3)}, 0")
        e(f"v_mov_b32 {vr(u + 5)}, {fhex(1e-5)}")
        e(f"v_cndmask_b32 {vr(u)}, {vr(a + 1)}, {vr(a)}, vcc")
        e(f"v_cndmask_b32 {vr(u + 4)}, {vr(b + 1)}, {vr(b)}, vcc")
        e(f"v_mul_f32 {vr(u + 4)}, {fhex(1.0 / 512)}, {vr(u + 4)}")
        e(f"v_add_f32 {vr(u + 1)}, {vr(u + 4)}, {vr(u + 5)}")
        e(f"v_rsq_f32 {vr(u + 1)}, {vr(u + 1)}")
        e(f"v_cmp_gt_u32 vcc, 2, {l}")
        e(f"v_mul_f32 {vr(u + 4)}, {vr(u + 4)}, {vr(u + 1)}")
        e(f"v_fmac_f32 {vr(u + 5)}, {vr(u + 4)}, {vr(u + 1)}")
        e(f"v_rsq_f32 {vr(u + 5)}, {vr(u + 5)}")
        e(f"v_cndmask_b32 {vr(u + 6)}, {vr(t + 8)}, {vr(vL16)}, vcc")
        e(f"v_mul_f32 {vr(u + 2)}, {vr(u + 5)}, {vr(u + 1)}")
        e(f"s_lshr_b32 s{sT4}, s{sT4}, 6")
        e(f"s_add_u32 s{sT4}, s{sT4}, {STATS}")
        self.st_store = e(f"buffer_store_dwordx4 {vr(u, 4)}, {vr(u + 6)}, {sd(dWS)}, s{sT4} offen sc1")
        e(f"v_cmp_gt_u32 vcc, 8, {l}")
        e(f"v_lshlrev_b32 {vr(vHv)}, 2, {l}")
        e(f"v_mov_b32 {vr(vHv + 1)}, 0")
        e(f"v_cndmask_b32 {vr(vHv)}, {vr(t + 8)}, {vr(vHv)}, vcc")
        e(f"v_cndmask_b32 {vr(vHv + 1)}, 0, {vr(vOne)}, vcc")

    def allreduce2(self, a, t):
        e = self.e
        for m in ("quad_perm:[1,0,3,2]", "quad_perm:[2,3,0,1]", "row_half_mirror", "row_mirror"):
            for rw in range(2):
                e(f"v_add_f32_dpp {vr(a + rw)}, {vr(a + rw)}, {vr(a + rw)} {m} row_mask:0xf bank_mask:0xf")
        for op in ("v_permlane16_swap_b32", "v_permlane32_swap_b32"):
            for rw in range(2):
                e(f"v_mov_b32 {vr(t + rw)}, {vr(a + rw)}")
            for rw in range(2):
                e(f"{op} {vr(a + rw)}, {vr(t + rw)}")
            for rw in range(2):
                e(f"v_add_f32 {vr(a + rw)}, {vr(a + rw)}, {vr(t + rw)}")

    def q_dma(self, s, gaps):
        P, e = self.P, self.e
        sl = s % 3
        tx = P.tag(f"x{s}", L_X + sl * 32 * K1, L_X + (sl + 1) * 32 * K1, shared=False)
        tq = P.tag(f"q{s}", L_WQ + sl * 16 * K1, L_WQ + (sl + 1) * 16 * K1)
        t1 = P.tag(f"w1_{s}", L_W1 + sl * 4 * K1, L_W1 + (sl + 1) * 4 * K1)
        at = (lambda n, d=0: ("at", gaps[n] + d)) if gaps else (lambda n, d=0: None)
        g0 = at(0, -4)
        e(f"s_add_u32 s{sKc}, s{sRot}, {s}", g0)
        e(f"s_and_b32 s{sKc}, s{sKc}, 7", g0)
        e(f"s_lshl_b32 s{sOq}, s{sKc}, 19", at(0, -3))
        e(f"s_lshl_b32 s{sOx}, s{sKc}, 7", at(0, -2))
        n = 0
        e(f"s_add_u32 m0, s{sMq}, {sl * 16 * K1}", at(n, -1))
        if not gaps:
            e(f"s_lshl_b32 s{sO1}, s{sKc}, 16")
        for i in range(4):
            e(f"buffer_load_dwordx4 {vr(vG + 8 + i)}, {sd(dWQ)}, s{sOq} offen offset:{i * 1024} lds", at(n), w=tq)
            n += 1
        for hi in range(2):
            e(f"s_add_u32 m0, s{sMx}, {sl * 32 * K1 + hi * 4096}", at(n, -1))
            for i in range(4):
                e(f"buffer_load_dwordx4 {vr(vG + 4 * hi + i)}, {sd(dX)}, s{sOx} offen offset:{i * 1024} lds", at(n), w=tx)
                n += 1
        if gaps:
            e(f"s_lshl_b32 s{sO1}, s{sKc}, 16", at(n, -2))
        e(f"s_add_u32 m0, s{sM1}, {sl * 4 * K1}", at(n, -1))
        e(f"buffer_load_dwordx4 {vr(vG + 12)}, {sd(dW1)}, s{sO1} offen lds", at(n), w=t1)

    def q_reads(self, n, gaps):
        s, ks = n >> 2, n & 3
        sl, p = s % 3, n & 1
        e = self.e
        at = (lambda k: ("at", gaps[k])) if gaps else (lambda k: None)
        ops = []
        ops += self.trpair("v", vA0 + 4 * p, vG + 21, sl * 16 * K1 + ks * 4096, 1024, f"q{s}", at(0))
        xa = (vG + 13 + ks) if sl < 2 else (vG + 17 + ks)
        xo = sl * 32 * K1 if sl < 2 else 0
        for b in range(2):
            ops.append(e(f"ds_read_b128 {ar(32 + 8 * p + 4 * b, 4)}, {vr(xa)} offset:{xo + b * 4096}", at(1), r=f"x{s}"))
        for q in (1, 2, 3):
            ops += self.trpair("a", 16 * p + 4 * (q - 1), vG + 21 + q, sl * 16 * K1 + ks * 4096, 1024, f"q{s}", at(1 + q))
        ops += self.trpair("a", 16 * p + 12, vG + 25, sl * 4 * K1 + ks * 1024, 256, f"w1_{s}", at(5))
        return ops

    def kv_dma(self, kind, j, gaps):
        P, e = self.P, self.e
        ns = 4 if kind == "K" else 3
        base = (L_K if kind == "K" else L_V) + (j % ns) * 8 * K1
        tg = P.tag(f"{kind}{j}", base, base + 8 * K1)
        st = sTk if kind == "K" else sTv
        at = (lambda n, d=0: ("at", self.add(gaps[n], d))) if gaps else (lambda n, d=0: None)
        e(f"s_lshl_b32 s{st}, s{sR}, 1", at(0, -3))
        e(f"s_add_u32 s{st}, s{st}, {j}", at(0, -3))
        e(f"s_and_b32 s{st}, s{st}, 15", at(0, -2))
        e(f"s_lshl_b32 s{st}, s{st}, 13", at(0, -2))
        e(f"s_add_u32 m0, s{sMk if kind == 'K' else sMv}, {(j % ns) * 8 * K1}", at(0, -1))
        for i in range(2):
            v = (vKd + i) if kind == "K" else vVd
            e(f"buffer_load_dwordx4 {vr(v)}, {sd(dK if kind == 'K' else dV)}, s{st} offen offset:{i * 1024} lds", at(i), w=tg)

    @staticmethod
    def add(g, d):
        return (g[0], g[1] + d) if isinstance(g, tuple) else g + d

    def w64_voff(self, stride, scol, pos):
        e = self.e
        e(f"s_mul_i32 s{sT5}, s{sW}, {128 * stride}", pos)
        e(f"s_add_u32 s{sT5}, s{sT5}, s{scol}", pos)
        e(f"v_lshrrev_b32 {vr(vDt)}, 2, {vr(vL)}", pos)
        e(f"v_mul_u32_u24 {vr(vDt)}, {stride}, {vr(vDt)}", pos)
        e(f"v_and_b32 {vr(vDt + 1)}, 3, {vr(vL)}", pos)
        e(f"v_lshl_add_u32 {vr(vDt)}, {vr(vDt + 1)}, 4, {vr(vDt)}", pos)
        e(f"v_add_u32 {vr(vDt)}, s{sT5}, {vr(vDt)}", pos)
        for i in (1, 2, 3):
            e(f"v_add_u32 {vr(vDt + i)}, {i * (16 * stride - 1024)}, {vr(vDt)}", pos)

    def w64_dma(self, tag, srd, stride, ldsbase, extra, gaps):
        P, e = self.P, self.e
        tg = P.tag(tag, ldsbase, ldsbase + 32 * K1)
        at = (lambda n, d=0: ("at", self.add(gaps[n], d))) if gaps else (lambda n, d=0: None)
        for n in range(8):
            if n % 4 == 0:
                e(f"s_mov_b32 s{sT6}, {(n >> 2) * 64 * stride + extra}", at(n, -2))
                e(f"s_add_u32 m0, s{sMx}, {ldsbase + (n >> 2) * 4096}", at(n, -1))
            e(f"buffer_load_dwordx4 {vr(vDt + (n & 3))}, {sd(srd)}, s{sT6} offen offset:{(n & 3) * 1024} lds", at(n), w=tg)

    def qproj(self):
        P, e = self.P, self.e
        P.barrier(pub=["q0", "w1_0"])
        rd = self.q_reads(0, None)
        P.mark("qproj")
        Q0 = P.here()
        qb = lambda n: Q0 + 9 * n
        for n in range(32):
            s, ks, p = n >> 2, n & 3, n & 1
            g = qb(n)
            if ks == 3:
                pub = [f"q{s + 1}", f"w1_{s + 1}"] if s < 7 else []
                vm = list(P.tags[f"x{s + 1}"].writers) if s < 7 else []
                if s == 1:
                    vm.append(self.st_store)
                P.barrier(("at", g), pub=pub, vm=vm, done=[f"q{s}", f"w1_{s}", f"x{s}"])
                if s == 1:
                    self.signal(sCnt, ("at", g + 1))
            nxt = None
            if n < 31:
                nxt = self.q_reads(n + 1, [g + k for k in range(6)] if ks != 3 else [g + 1 + k for k in range(6)])
                P.wait(("at", g + 8), lg=nxt)
            if ks == 1:
                self.trpair("v", vC1, vG + 26, (s % 3) * 4 * K1, 256, f"w1_{s}", ("at", g + 6))
            if ks == 3:
                dg = [g + 7, g + 8] + [g + 9 * a + b for a in (1, 2, 3) for b in (5, 6, 7, 8)]
                if s + 3 < 8:
                    self.q_dma(s + 3, dg[:13])
                elif s == 5:
                    k = 0
                    for kind, j in [("K", 0), ("V", 0), ("K", 1), ("V", 1), ("K", 2), ("K", 3)]:
                        self.kv_dma(kind, j, [g + 8 + 4 * k, g + 9 + 4 * k])
                        k += 1
            if n == 4:
                self.poll_issue(vr(vHv), dDBG, 0, ("at", g + 3))
            if n == 6:
                self.poll_check(vr(vHv + 1), ("at", g + 8))
            if n == 22:
                e(f"v_mov_b32 {vr(vHv)}, 0", ("at", g))
                self.poll_issue(vr(vHv), dWS, f"s{sCnt}", ("at", g + 3))
            if n == 25:
                self.poll_check(32, ("at", g + 8))
            if n == 26:
                e(f"v_and_b32 {vr(vHv)}, 31, {vr(vL)}", ("at", g))
                e(f"v_lshlrev_b32 {vr(vHv)}, 4, {vr(vHv)}", ("at", g))
                e(f"s_lshl_b32 s{sT0}, s{sTb}, 9", ("at", g + 1))
                e(f"s_add_u32 s{sT0}, s{sT0}, {STATS}", ("at", g + 2))
                e(f"s_xor_b32 s{sT1}, s{sT0}, 512", ("at", g + 3))
                e(f"buffer_load_dwordx4 {vr(vSt, 4)}, {vr(vHv)}, {sd(dWS)}, s{sT0} offen sc1", ("at", g + 6))
                e(f"buffer_load_dwordx4 {vr(vSt + 4, 4)}, {vr(vHv)}, {sd(dWS)}, s{sT1} offen sc1", ("at", g + 7))
            A = [vr(vA0 + 4 * p, 4)] + [ar(16 * p + 4 * (q - 1), 4) for q in (1, 2, 3)]
            B = [ar(32 + 8 * p + 4 * b, 4) for b in range(2)]
            for q in range(4):
                for b in range(2):
                    d = vr(vQ + (2 * q + b) * 16, 16)
                    self.mfma(d, A[q], B[b], "0" if n == 0 else None)
            self.mfma(vr(vGa, 16), ar(16 * p + 12, 4), B[0], "0" if n == 0 else None)
            self.colsum(vA0 + 4 * p, vCs, vCs + 1, vT, ("st", "cs", g, g + 8))
            if ks == 2:
                self.colsum(vC1, vCs + 2, vCs + 3, vT + 2, ("st", "cs1", g, g + 17))
        self.stamp("qmain")
        P.mark("qepi")
        t = vT
        e(f"v_add_f32 {vr(vCs)}, {vr(vCs)}, {vr(vCs + 1)}")
        e(f"v_add_f32 {vr(vCs + 2)}, {vr(vCs + 2)}, {vr(vCs + 3)}")
        self.halfsum(vCs, t)
        self.halfsum(vCs + 2, t + 1)
        P.tag("cs", L_SCR, L_SCR + 1024)
        e(f"v_and_b32 {vr(t + 2)}, 31, {vr(vL)}")
        e(f"v_lshlrev_b32 {vr(t + 2)}, 2, {vr(t + 2)}")
        e(f"v_add_u32 {vr(t + 2)}, {L_SCR}, {vr(t + 2)}")
        e(f"s_lshl_b32 s{sT0}, s{sW}, 7")
        e(f"v_add_u32 {vr(t + 3)}, s{sT0}, {vr(t + 2)}")
        e(f"ds_write_b32 {vr(t + 3)}, {vr(vCs)}", w="cs")
        e(f"ds_write_b32 {vr(t + 3)}, {vr(vCs + 2)} offset:512", w="cs")
        for q in (1, 2, 3):
            e(f"v_xor_b32 {vr(t + 3 + q)}, {q * 128}, {vr(t + 3)}")
        P.barrier(pub=["cs"])
        for q in range(4):
            e(f"ds_read_b32 {vr(t + 8 + q)}, {vr(t + 3 + q)}", r="cs")
        for q in range(4):
            e(f"ds_read_b32 {vr(vCs + q)}, {vr(t + 2)} offset:{512 + 128 * q}", r="cs")
        self.kv_dma("V", 2, None)
        e(f"s_lshl_b32 s{sT4}, s{sCb}, 6")
        self.w64_voff(1024, sT4, None)
        self.w64_dma("w2", dW2, 1024, L_W2, 0, None)
        self.mk_mfrag(vG + 20, vSt, t)
        self.mk_mfrag(vG + 24, vSt + 4, t)
        e(f"v_add_f32 {vr(vCs)}, {vr(vCs)}, {vr(vCs + 1)}")
        e(f"v_add_f32 {vr(vCs + 2)}, {vr(vCs + 2)}, {vr(vCs + 3)}")
        e(f"v_add_f32 {vr(vCs)}, {vr(vCs)}, {vr(vCs + 2)}")
        self.mk_cfrag(vG + 16, vCs, t)
        for q in range(4):
            self.mk_cfrag(vG + 4 * q, t + 8 + q, t)
        self.mfma(vr(vGa, 16), vr(vG + 16, 4), vr(vG + 20, 4))
        for q in range(4):
            for b in range(2):
                self.mfma(vr(vQ + (2 * q + b) * 16, 16), vr(vG + 4 * q, 4), vr(vG + 20 + 4 * b, 4))
        self.gelu(vGa, 16, vSt + 2, vA0, t)
        e(f"s_lshl_b32 s{sT0}, s{sTb}, 15")
        e(f"s_lshl_b32 s{sT1}, s{sCb}, 11")
        e(f"s_add_u32 s{sT0}, s{sT0}, s{sT1}")
        self.h_st = [e(f"buffer_store_dwordx4 {vr(vA0 + 4 * i, 4)}, {vr(vL16)}, {sd(dH)}, s{sT0} offen offset:{i * 1024} sc1")
                     for i in range(2)]
        sc = 128 ** -0.5 * LOG2E
        e(f"v_mul_f32 {vr(t)}, {fhex(sc)}, {vr(vSt + 1)}")
        e(f"v_mul_f32 {vr(t + 1)}, {fhex(sc)}, {vr(vSt + 5)}")
        for tl in range(8):
            b = tl & 1
            for r in range(0, 16, 2):
                a = vQ + tl * 16 + r
                e(f"v_mul_f32 {vr(a)}, {vr(a)}, {vr(t + b)}")
                e(f"v_mul_f32 {vr(a + 1)}, {vr(a + 1)}, {vr(t + b)}")
                e(f"v_cvt_pk_bf16_f32 {vr(vQ + tl * 8 + r // 2)}, {vr(a)}, {vr(a + 1)}")
        self.stamp("qepi")

    def k_reads(self, j, gaps):
        ops = []
        for n in range(8):
            pos = ("at", gaps[n]) if gaps else None
            ops.append(self.e(f"ds_read_b128 {ar(128 + 4 * n, 4)}, {vr(vKa + n)} offset:{(j % 4) * 8 * K1}", pos, r=f"K{j}"))
        return ops

    def v_read(self, j, ks, db, gap):
        return self.trpair("a", 160 + 16 * ks + 4 * db, vVa + db, (j % 3) * 8 * K1 + ks * 4096, 1024, f"V{j}", ("at", gap))

    def qk(self, b):
        for n in range(8):
            self.mfma(vr(vS + 16 * b, 16), ar(128 + 4 * n, 4), vr(vQ + (2 * (n >> 1) + b) * 8 + 4 * (n & 1), 4), "0" if n == 0 else None)

    def sm(self, j, b, after, dl):
        e = self.e
        pos = ("st", "sm", after, dl)
        S = vS + 16 * b
        Pd = vP + 16 * (j & 1) + 8 * b
        e(f"v_exp_f32 {vr(S)}, {vr(S)}", pos)
        for r in range(16):
            if r < 15:
                e(f"v_exp_f32 {vr(S + r + 1)}, {vr(S + r + 1)}", pos)
            e(f"v_add_f32 {vr(vLs + 2 * b + (r & 1))}, {vr(vLs + 2 * b + (r & 1))}, {vr(S + r)}", pos)
            if r & 1:
                e(f"v_cvt_pk_bf16_f32 {vr(Pd + r // 2)}, {vr(S + r - 1)}, {vr(S + r)}", pos)

    def attention(self):
        P, e = self.P, self.e
        JG = self.o["JG2"]
        P.barrier(pub=["K0", "V0", "K1"], vm=self.h_st)
        e(f"s_add_u32 s{sT0}, s{sCnt}, {C_H * 128}")
        self.signal(sT0)
        kr = self.k_reads(0, None)
        P.mark("attn")
        g = P.here()
        G = {}
        for j in range(-1, 16):
            for name in ("q0", "p0", "q1", "p1", "g2"):
                if name[0] == "q" and j == 15 or name[0] == "p" and j == -1:
                    continue
                if name == "g2" and not (JG <= j < JG + 4):
                    continue
                G[(j, name)] = g
                g += 8
        self.G = G
        end = g
        vwait = None
        for j in range(-1, 16):
            if j < 15:
                g = G[(j, "q0")]
                if j == -1:
                    vr_ = []
                    for n in range(8):
                        vr_ += self.v_read(0, n >> 2, n & 3, g + n)
                    vwait = vr_
                self.extras(j, "q0", g)
                self.qk(0)
                self.sm(j + 1, 0, g + 8 + 2, G.get((j + 1, "q0"), G[(j + 1, "p0")]) - 1)
            if j >= 0:
                g = G[(j, "p0")]
                P.wait(("at", g - 1), lg=vwait)
                self.extras(j, "p0", g)
                self.pv(j, 0, None)
            if j < 15:
                g = G[(j, "q1")]
                pub = ([f"K{j + 2}"] if 1 < j + 2 < 16 else []) + ([f"V{j + 1}"] if j >= 0 else [])
                done = [f"K{j + 1}"] + ([f"V{j}"] if j >= 0 else [])
                x = self.bar_extras(j)
                P.barrier(("at", g - 1), pub=pub + x["pub"], done=done + x["done"], vm=x["vm"])
                self.after_bar(j, g)
                self.qk(1)
                if j + 2 < 16:
                    kr = self.k_reads(j + 2, [g + n for n in range(8)])
                    nq = G[(j + 1, "q0")]
                    P.wait(("at", nq - 1), lg=kr)
                if j + 5 < 16:
                    self.kv_dma("K", j + 5, [g + 3, g + 4])
                if j >= 0 and j + 3 < 16:
                    self.kv_dma("V", j + 3, [g + 6, g + 7])
                self.sm(j + 1, 1, g + 8 + 2, G.get((j + 1, "q1"), G[(j + 1, "p1")]) - 1)
            if j >= 0:
                g = G[(j, "p1")]
                vwait = self.pv(j, 1, g if j < 15 else None)
            if (j, "g2") in G:
                self.g2_group(j - JG, G[(j, "g2")])
        self.stamp("attn")

    def pv(self, j, b, rgap):
        ops = []
        for n in range(8):
            ks, db = n >> 2, n & 3
            self.mfma(ar((2 * db + b) * 16, 16), ar(160 + 16 * ks + 4 * db, 4), vr(vP + 16 * (j & 1) + 8 * b + 4 * ks, 4),
                      "0" if (j == 0 and ks == 0) else None)
            if rgap is not None:
                ops += self.v_read(j + 1, ks, db, rgap + n)
        return ops

    def bar_extras(self, j):
        JG = self.o["JG2"]
        x = dict(pub=[], done=[], vm=[])
        if j == JG - 1:
            x["pub"].append("w2")
        if j == JG + 4:
            x["done"].append("w2")
        if j == JG + 6:
            x["vm"] += self.x1_st
        if j == 14:
            x["pub"] += ["w3_0", "w3_1", "w3_2"]
        return x

    def after_bar(self, j, g):
        e = self.e
        JG = self.o["JG2"]
        if j == JG + 6:
            e(f"s_lshl_b32 s{sT0}, s{sPar}, 7", ("at", g))
            e(f"s_add_u32 s{sT0}, s{sT0}, s{sCnt}", ("at", g))
            e(f"s_add_u32 s{sT0}, s{sT0}, {C_X1 * 128}", ("at", g + 1))
            self.signal(sT0, ("at", g + 2))
        if j == 14:
            self.wo_voff(("st", "wov", g - 16, g - 2))
            self.wo_dma(0, L_K, [g + 2, g + 3, g + 4, g + 5, g + 6, g + 7, g + 18, g + 19])

    def extras(self, j, name, g):
        P, e = self.P, self.e
        JG = self.o["JG2"]
        t = vT
        if name == "q0" and j == 0:
            pos = ("st", "w3v", g, g + 6)
            e(f"s_mul_i32 s{sT3}, s{sCb}, 3", pos)
            e(f"s_lshl_b32 s{sT4}, s{sCb}, 1", pos)
            e(f"s_add_u32 s{sT4}, s{sT4}, 11", pos)
            e(f"s_cmp_lt_u32 s{sCb}, 11", ("at", g + 3))
            e(f"s_cselect_b32 s{sT4}, s{sT3}, s{sT4}", ("at", g + 3))
            e(f"s_lshl_b32 s{sT4}, s{sT4}, 6", ("at", g + 4))
            self.w64_voff(2752, sT4, ("st", "w3v2", g + 5, g + 15))
        if name == "q0" and j in (1, 2):
            self.w64_dma(f"w3_{j - 1}", dW3, 2752, L_W3[j - 1], (j - 1) * 64, [g + 2 * n + 1 for n in range(8)])
        if name == "q0" and j == JG + 5:
            self.w64_dma("w3_2", dW3, 2752, L_W3[2], 128, [g + 2 * n + 1 for n in range(8)])
        if name == "q0" and j == JG - 2:
            pos = ("st", "hp", g, g + 12)
            e(f"s_lshl_b32 s{sT0}, s{sPar}, 1", pos)
            e(f"s_add_u32 s{sT0}, s{sT0}, s{sR}", pos)
            e(f"s_sub_u32 s{sT0}, s{sT0}, 1", pos)
            e(f"s_lshl_b32 s{sT1}, s{sT0}, 12", pos)
            e(f"s_cmp_lt_u32 s{sT0}, 8", ("at", g + 5))
            e(f"s_cselect_b32 s{sT1}, s{sT1}, s{sCnt}", ("at", g + 5))
            pos = ("st", "hp2", g + 6, g + 12)
            e(f"v_and_b32 {vr(t)}, 1, {vr(vL)}", pos)
            e(f"v_mov_b32 {vr(t + 1)}, s{sCnt}", pos)
            e(f"v_cmp_eq_u32 vcc, 0, {vr(t)}", pos)
            e(f"v_mov_b32 {vr(t + 2)}, s{sT1}", pos)
            e(f"v_add_u32 {vr(t + 1)}, {C_H * 128}, {vr(t + 1)}", pos)
            e(f"v_add_u32 {vr(t + 2)}, {C_H * 128}, {vr(t + 2)}", pos)
            e(f"v_cndmask_b32 {vr(t + 4)}, {vr(t + 2)}, {vr(t + 1)}, vcc", pos)
            self.poll_issue(vr(t + 4), dWS, 0, ("at", g + 14))
        if name == "p0" and j == JG - 2:
            pos = ("st", "hv", g, g + 23)
            e(f"s_lshl_b32 s{sT0}, s{sTb}, 5", pos)
            e(f"v_and_b32 {vr(t)}, 31, {vr(vL)}", pos)
            e(f"v_add_u32 {vr(t)}, s{sT0}, {vr(t)}", pos)
            e(f"v_and_b32 {vr(t + 1)}, 32, {vr(vL)}", pos)
            for gi, dlt in enumerate((-1, 1, -2, 2)):
                e(f"v_add_u32 {vr(t + 2)}, {dlt}, {vr(t)}", pos)
                e(f"v_and_or_b32 {vr(t + 3)}, {vr(t + 2)}, 31, {vr(t + 1)}", pos)
                e(f"v_ashrrev_i32 {vr(t + 2)}, 5, {vr(t + 2)}", pos)
                e(f"v_lshlrev_b32 {vr(t + 3)}, 4, {vr(t + 3)}", pos)
                e(f"v_lshl_add_u32 {vr(vHv + gi)}, {vr(t + 2)}, 15, {vr(t + 3)}", pos)
            e(f"v_lshrrev_b32 {vr(t + 1)}, 1, {vr(t + 1)}", pos)
            e(f"v_lshl_add_u32 {vr(t + 5)}, {vr(t)}, 10, {vr(t + 1)}", pos)
            e(f"s_lshl_b32 s{sT0}, s{sCb}, 6", ("at", g + 24))
            e(f"buffer_load_dwordx4 {vr(vXt, 4)}, {vr(t + 5)}, {sd(dX)}, s{sT0} offen", ("at", g + 25))
            e(f"buffer_load_dwordx4 {vr(vXt + 4, 4)}, {vr(t + 5)}, {sd(dX)}, s{sT0} offen offset:32", ("at", g + 26))
        if name == "q0" and j == JG - 1:
            self.poll_check(32, ("at", g + 3))
        if name == "q0" and JG - 1 <= j < JG + 3:
            q = j - (JG - 1)
            gg = g + (5 if q == 0 else 1)
            for n in range(8):
                if n % 4 == 0:
                    e(f"s_mov_b32 s{sT2}, {(2 * q + (n >> 2)) * 4096}", ("at", gg + n - 1))
                e(f"buffer_load_dwordx4 {ar(192 + 32 * (q & 1) + 4 * n, 4)}, {vr(vHv + q)}, {sd(dH)}, s{sT2} offen offset:{(n & 3) * 1024} sc1",
                  ("at", gg + n))
        if name == "p0" and JG <= j < JG + 4:
            q = j - JG
            ops = []
            for n in range(8):
                ops += self.trpair("v", vG + 4 * n, vW64 + 1, (8 * q + n) * 1024, 256, "w2", ("at", g + n))
            P.wait(("at", g + 15), lg=ops)
        if name == "q0" and j == JG + 4:
            self.g2_epilogue(g + 2, g + 56)
        if name == "q0" and j == 13:
            e(f"s_lshl_b32 s{sT2}, s{sPar}, 7", ("at", g))
            e(f"s_add_u32 s{sT2}, s{sT2}, s{sCnt}", ("at", g + 1))
            e(f"s_add_u32 s{sT2}, s{sT2}, {C_X1 * 128}", ("at", g + 2))
            e(f"v_mov_b32 {vr(t + 4)}, 0", ("at", g + 2))
            self.poll_issue(vr(t + 4), dWS, f"s{sT2}", ("at", g + 12))
        if name == "q0" and j == 14:
            self.poll_check(16, ("at", g + 1))
            self.x1_loads(0, 16, 192, [g + 3 + n for n in range(12)] + [g + 24 + n for n in range(4)])

    def x1_loads(self, k0, k1, areg, gaps):
        e = self.e
        for n, ks in enumerate(range(k0, k1)):
            at = (lambda d=0: ("at", gaps[n] + d)) if gaps else (lambda d=0: None)
            if n == 0:
                e(f"s_lshl_b32 s{sT3}, s{sTb}, 15", at(-1))
                e(f"s_add_u32 s{sT3}, s{sT3}, {X1 + ks * 1024}", at(-1))
            elif n % 4 == 0:
                e(f"s_add_u32 s{sT3}, s{sT3}, 4096", at())
            e(f"buffer_load_dwordx4 {ar(areg + 4 * n, 4)}, {vr(vL16)}, {sd(dWS)}, s{sT3} offen offset:{(n & 3) * 1024} sc1", at())

    def g2_group(self, q, g):
        for n in range(8):
            self.mfma(vr(vGa, 16), vr(vG + 4 * n, 4), ar(192 + 32 * (q & 1) + 4 * n, 4), "0" if (q == 0 and n == 0) else None)

    def g2_epilogue(self, g, dl):
        e = self.e
        pos = ("st", "g2e", g, dl)
        t = vT + 6
        e(f"v_mul_f32 {vr(t)}, {vr(vSt)}, {vr(vSt + 1)}", pos)
        for r in range(8):
            a = vGa + 2 * r
            e(f"v_lshlrev_b32 {vr(t + 1)}, 16, {vr(vXt + r)}", pos)
            e(f"v_and_b32 {vr(t + 2)}, 0xffff0000, {vr(vXt + r)}", pos)
            e(f"v_fma_f32 {vr(t + 1)}, {vr(t + 1)}, {vr(vSt + 1)}, -{vr(t)}", pos)
            e(f"v_fma_f32 {vr(t + 2)}, {vr(t + 2)}, {vr(vSt + 1)}, -{vr(t)}", pos)
            e(f"v_add_f32 {vr(a)}, {vr(a)}, {vr(t + 1)}", pos)
            e(f"v_add_f32 {vr(a + 1)}, {vr(a + 1)}, {vr(t + 2)}", pos)
            e(f"v_cvt_pk_bf16_f32 {vr(vA0 + r)}, {vr(a)}, {vr(a + 1)}", pos)
            if r == 0:
                e(f"v_add_f32 {vr(vC1)}, {vr(a)}, {vr(a + 1)}", pos)
                e(f"v_mul_f32 {vr(vC1 + 1)}, {vr(a)}, {vr(a)}", pos)
            else:
                e(f"v_add_f32 {vr(vC1)}, {vr(vC1)}, {vr(a)}", pos)
                e(f"v_fmac_f32 {vr(vC1 + 1)}, {vr(a)}, {vr(a)}", pos)
                e(f"v_add_f32 {vr(vC1)}, {vr(vC1)}, {vr(a + 1)}", pos)
            e(f"v_fmac_f32 {vr(vC1 + 1)}, {vr(a + 1)}, {vr(a + 1)}", pos)
        self.halfsum(vC1, t + 1, pos)
        self.halfsum(vC1 + 1, t + 2, pos)
        e(f"v_cmp_gt_u32 vcc, 32, {vr(vL)}", pos)
        e(f"v_lshlrev_b32 {vr(t + 1)}, 3, {vr(vL)}", pos)
        e(f"v_mov_b32 {vr(t + 2)}, {hex(OOB)}", pos)
        e(f"v_cndmask_b32 {vr(t + 1)}, {vr(t + 2)}, {vr(t + 1)}, vcc", pos)
        e(f"s_lshl_b32 s{sT0}, s{sTb}, 15", pos)
        e(f"s_lshl_b32 s{sT1}, s{sCb}, 11", pos)
        e(f"s_add_u32 s{sT0}, s{sT0}, s{sT1}", pos)
        e(f"s_add_u32 s{sT0}, s{sT0}, {X1}", pos)
        st = [e(f"buffer_store_dwordx4 {vr(vA0 + 4 * i, 4)}, {vr(vL16)}, {sd(dWS)}, s{sT0} offen offset:{i * 1024} sc1", pos)
              for i in range(2)]
        e(f"s_lshl_b32 s{sT0}, s{sR}, 1", pos)
        e(f"s_add_u32 s{sT0}, s{sT0}, s{sPar}", pos)
        e(f"s_lshl_b32 s{sT0}, s{sT0}, 4", pos)
        e(f"s_add_u32 s{sT0}, s{sT0}, s{sCb}", pos)
        e(f"s_lshl_b32 s{sT0}, s{sT0}, 2", pos)
        e(f"s_add_u32 s{sT0}, s{sT0}, s{sW}", pos)
        e(f"s_lshl_b32 s{sT0}, s{sT0}, 8", pos)
        e(f"s_add_u32 s{sT0}, s{sT0}, {X1ST}", pos)
        st.append(e(f"buffer_store_dwordx2 {vr(vC1, 2)}, {vr(t + 1)}, {sd(dWS)}, s{sT0} offen sc1", pos))
        self.x1_st = st

    def wo_voff(self, pos):
        e = self.e
        e(f"s_lshl_b32 s{sT5}, s{sKq}, 20", pos)
        e(f"s_lshl_b32 s{sT6}, s{sW}, 15", pos)
        e(f"s_add_u32 s{sT5}, s{sT5}, s{sT6}", pos)
        e(f"s_lshl_b32 s{sT6}, s{sCt}, 8", pos)
        e(f"s_add_u32 s{sT5}, s{sT5}, s{sT6}", pos)
        e(f"v_and_b32 {vr(vDt)}, 0xff, {vr(vVd)}", pos)
        e(f"v_lshrrev_b32 {vr(vDt + 1)}, 4, {vr(vL)}", pos)
        e(f"v_lshl_add_u32 {vr(vDt)}, {vr(vDt + 1)}, 10, {vr(vDt)}", pos)
        e(f"v_add_u32 {vr(vDt)}, s{sT5}, {vr(vDt)}", pos)
        for i in (1, 2, 3):
            e(f"v_add_u32 {vr(vDt + i)}, {i * 3072}, {vr(vDt)}", pos)

    def wo_dma(self, i, base, gaps):
        P, e = self.P, self.e
        tg = P.tag(f"wo{i}", base, base + 32 * K1)
        at = (lambda n, d=0: ("at", self.add(gaps[n], d))) if gaps else (lambda n, d=0: None)
        for n in range(8):
            if n == 0:
                e(f"s_add_u32 s{sT6}, s{sHd}, {i}", at(n, -2))
                e(f"s_and_b32 s{sT6}, s{sT6}, 7", at(n, -2))
                e(f"s_lshl_b32 s{sT6}, s{sT6}, 17", at(n, -1))
            if n == 4:
                e(f"s_add_u32 s{sT6}, s{sT6}, 0x4000", at(n))
            if n % 4 == 0:
                e(f"s_add_u32 m0, s{sMx}, {base + (n >> 2) * 4096}", at(n, -1) if n == 0 else at(n))
            e(f"buffer_load_dwordx4 {vr(vDt + (n & 3))}, {sd(dWO)}, s{sT6} offen offset:{(n & 3) * 1024} lds", at(n), w=tg)

    def o_epilogue(self):
        P, e = self.P, self.e
        P.mark("oepi")
        t = vT
        self.x1_loads(16, 32, 128, None)
        for b in range(2):
            e(f"v_add_f32 {vr(vLs + 2 * b)}, {vr(vLs + 2 * b)}, {vr(vLs + 2 * b + 1)}")
        for b in range(2):
            self.halfsum(vLs + 2 * b, t + b)
        for b in range(2):
            e(f"v_rcp_f32 {vr(vLs + 2 * b)}, {vr(vLs + 2 * b)}")
        e(f"s_lshl_b32 s{sT0}, s{sTb}, 18")
        e(f"s_lshl_b32 s{sT1}, s{sHd}, 13")
        e(f"s_add_u32 s{sT0}, s{sT0}, s{sT1}")
        e(f"s_add_u32 s{sT0}, s{sT0}, {OO}")
        e(f"s_xor_b32 s{sT1}, s{sT0}, 0x40000")
        self.o_st = []
        for b in range(2):
            for db in range(4):
                src = (2 * db + b) * 16
                dst = vQ + b * 32 + db * 8
                for r in range(0, 16, 2):
                    tt = t + 4 + (r & 2)
                    e(f"v_accvgpr_read_b32 {vr(tt)}, {ar(src + r)}")
                    e(f"v_accvgpr_read_b32 {vr(tt + 1)}, {ar(src + r + 1)}")
                    e(f"v_mul_f32 {vr(tt)}, {vr(tt)}, {vr(vLs + 2 * b)}")
                    e(f"v_mul_f32 {vr(tt + 1)}, {vr(tt + 1)}, {vr(vLs + 2 * b)}")
                    e(f"v_cvt_pk_bf16_f32 {vr(dst + r // 2)}, {vr(tt)}, {vr(tt + 1)}")
                if db == 2:
                    e(f"s_add_u32 s{sT0 + b}, s{sT0 + b}, 4096")
                for i in range(2):
                    self.o_st.append(e(f"buffer_store_dwordx4 {vr(dst + 4 * i, 4)}, {vr(vL16)}, {sd(dWS)}, s{sT0 + b} offen offset:{((2 * db + i) & 3) * 1024} sc1"))
        self.stamp("oepi")

    def g3(self):
        P, e = self.P, self.e
        t = vT
        acc = vG
        fa = vS
        fc = vS + 24
        cs = vP
        xs = vP + 8
        e(f"v_and_b32 {vr(t)}, 31, {vr(vL)}")
        e(f"v_lshlrev_b32 {vr(t)}, 3, {vr(t)}")
        e(f"v_lshrrev_b32 {vr(t + 1)}, 5, {vr(vL)}")
        e(f"v_lshl_add_u32 {vr(t)}, {vr(t + 1)}, 13, {vr(t)}")
        e(f"s_lshl_b32 s{sT2}, s{sR}, 1")
        e(f"s_add_u32 s{sT2}, s{sT2}, s{sPar}")
        e(f"s_lshl_b32 s{sT2}, s{sT2}, 6")
        e(f"s_add_u32 s{sT2}, s{sT2}, s{sW}")
        e(f"s_lshl_b32 s{sT2}, s{sT2}, 8")
        e(f"s_add_u32 s{sT2}, s{sT2}, {X1ST}")
        e(f"s_add_u32 s{sT3}, s{sT2}, 4096")
        for i in range(8):
            e(f"buffer_load_dwordx2 {vr(xs + 2 * i, 2)}, {vr(t)}, {sd(dWS)}, s{sT2 if i < 4 else sT3} offen offset:{(i & 3) * 1024} sc1")
        for i in range(6):
            e(f"v_mov_b32 {vr(cs + i)}, 0")
        e(f"v_add_u32 {vr(t + 2)}, s{sMx}, {vr(vW64)}")
        e(f"v_add_u32 {vr(t + 3)}, s{sMx}, {vr(vW64 + 1)}")

        def rd(n, gaps):
            ops = []
            for c in range(3):
                pos = ("at", gaps[c]) if gaps else None
                ops += self.trpair("v", fa + 12 * (n & 1) + 4 * c, vW64 + (c == 2), (L_W3[c] if c < 2 else 0) + n * 1024, 256, f"w3_{c}", pos)
            return ops
        rd(0, None)
        P.mark("g3")
        g0 = P.here()
        for n in range(32):
            g = g0 + 3 * n
            if n < 31:
                P.wait(("at", g + 2), lg=rd(n + 1, [g, g, g + 1]))
            if n == 12:
                P.barrier(("at", g + 2), vm=self.o_st)
                e(f"s_lshl_b32 s{sT0}, s{sKq}, 7", ("at", g))
                e(f"s_add_u32 s{sT0}, s{sT0}, s{sCnt}", ("at", g + 1))
                e(f"s_add_u32 s{sT0}, s{sT0}, {C_O * 128}", ("at", g + 1))
                self.signal(sT0, ("at", g + 3))
            breg = 192 + 4 * n if n < 16 else 128 + 4 * (n - 16)
            for c in range(3):
                self.mfma(vr(acc + 16 * c, 16), vr(fa + 12 * (n & 1) + 4 * c, 4), ar(breg, 4), "0" if n == 0 else None)
        for m in range(24):
            c, k8 = m % 3, m // 3
            gg = g0 + 4 * m
            self.trpair("v", fc, t + 2 + (c == 2), (L_W3[c] if c < 2 else 0) + k8 * 1024, 256, f"w3_{c}", ("at", gg))
            self.colsum(fc, cs + 2 * c, cs + 2 * c + 1, t + 4, ("st", "cs3", gg + 1, min(gg + 3, g0 + 95)))
        P.mark("g3epi")
        for c in range(3):
            e(f"v_add_f32 {vr(cs + 2 * c)}, {vr(cs + 2 * c)}, {vr(cs + 2 * c + 1)}")
        for c in range(3):
            self.halfsum(cs + 2 * c, t + 4 + c)
        P.tag("cs3", L_SCR + 1024, L_SCR + 3072)
        e(f"v_and_b32 {vr(t + 2)}, 31, {vr(vL)}")
        e(f"v_lshlrev_b32 {vr(t + 2)}, 2, {vr(t + 2)}")
        e(f"v_add_u32 {vr(t + 2)}, {L_SCR + 1024}, {vr(t + 2)}")
        e(f"s_lshl_b32 s{sT0}, s{sW}, 7")
        e(f"v_add_u32 {vr(t + 3)}, s{sT0}, {vr(t + 2)}")
        for c in range(3):
            e(f"ds_write_b32 {vr(t + 3)}, {vr(cs + 2 * c)} offset:{512 * c}", w="cs3")
        P.barrier(pub=["cs3", "wo0"], done=["w3_0", "w3_1", "w3_2"])
        for c in range(3):
            for q in range(4):
                e(f"ds_read_b32 {vr(fa + 4 * c + q)}, {vr(t + 2)} offset:{512 * c + 128 * q}", r="cs3")
        self.wo_dma(1, 0, None)
        self.wo_dma(2, 32 * K1, None)
        self.wo_dma(3, 96 * K1, None)
        for i in range(1, 8):
            e(f"v_add_f32 {vr(xs)}, {vr(xs)}, {vr(xs + 2 * i)}")
            e(f"v_add_f32 {vr(xs + 1)}, {vr(xs + 1)}, {vr(xs + 2 * i + 1)}")
        self.halfsum(xs, t + 4)
        self.halfsum(xs + 1, t + 5)
        e(f"v_mul_f32 {vr(xs)}, {fhex(1.0 / 512)}, {vr(xs)}")
        e(f"v_mul_f32 {vr(xs + 1)}, {fhex(1.0 / 512)}, {vr(xs + 1)}")
        e(f"v_fma_f32 {vr(xs + 1)}, -{vr(xs)}, {vr(xs)}, {vr(xs + 1)}")
        e(f"v_max_f32 {vr(xs + 1)}, 0, {vr(xs + 1)}")
        e(f"v_add_f32 {vr(xs + 1)}, {fhex(1e-5)}, {vr(xs + 1)}")
        e(f"v_rsq_f32 {vr(xs + 1)}, {vr(xs + 1)}")
        self.mk_mfrag(xs + 4, xs, t + 4)
        for c in range(3):
            e(f"v_add_f32 {vr(fa + 4 * c)}, {vr(fa + 4 * c)}, {vr(fa + 4 * c + 1)}")
            e(f"v_add_f32 {vr(fa + 4 * c + 2)}, {vr(fa + 4 * c + 2)}, {vr(fa + 4 * c + 3)}")
            e(f"v_add_f32 {vr(cs + c)}, {vr(fa + 4 * c)}, {vr(fa + 4 * c + 2)}")
        for c in range(3):
            self.mk_cfrag(fa + 12 + 4 * c, cs + c, t + 4)
        for c in range(3):
            self.mfma(vr(acc + 16 * c, 16), vr(fa + 12 + 4 * c, 4), vr(xs + 4, 4))
        e(f"s_mul_i32 s{sT0}, s{sTb}, {86 * 1024}")
        e(f"s_lshl_b32 s{sT1}, s{sT4}, 5")
        e(f"s_add_u32 s{sT0}, s{sT0}, s{sT1}")
        e(f"s_add_u32 s{sT0}, s{sT0}, {H3}")
        e(f"s_add_u32 s{sT1}, s{sT0}, 4096")
        e(f"s_cmp_lt_u32 s{sCb}, 11")
        e(f"s_cselect_b32 s{sT2}, 0, {hex(OOB)}")
        e(f"v_or_b32 {vr(t + 8)}, s{sT2}, {vr(vL16)}")
        self.h3_st = []
        for c in range(3):
            self.gelu(acc + 16 * c, 16, xs + 1, vQ + 32 + 8 * c, t + 4)
            for i in range(2):
                n = 2 * c + i
                self.h3_st.append(e(f"buffer_store_dwordx4 {vr(vQ + 32 + 8 * c + 4 * i, 4)}, {vr(vL16 if c < 2 else t + 8)}, {sd(dWS)}, "
                                    f"s{sT0 if n < 4 else sT1} offen offset:{(n & 3) * 1024} sc1"))
        self.stamp("g3")

    G4SLOT = [96 * K1, 128 * K1, 64 * K1, 0, 32 * K1]

    def g4_dma(self, c, gaps):
        P, e = self.P, self.e
        base = self.G4SLOT[c % 5]
        tg = P.tag(f"g4_{c}", base, base + 32 * K1)
        at = (lambda n, d=0: ("at", gaps[n] + d)) if gaps else (lambda n, d=0: None)
        for ee in range(2):
            n = 4 * ee
            e(f"s_lshl_b32 s{sT6}, s{sW}, 1", at(n, -1))
            e(f"s_add_u32 s{sT6}, s{sT6}, {8 * c + ee}", at(n, -1))
            e(f"s_lshl_b32 s{sT5}, s{sT6}, 14", at(n, -1))
            e(f"s_add_u32 m0, s{sMx}, {base + ee * 4096}", at(n))
            e(f"s_lshl_b32 s{sT6}, s{sT6}, 10", at(n))
            e(f"buffer_load_dwordx4 {vr(vHv)}, {sd(dW4)}, s{sT5} offen lds", at(n), w=tg)
            e(f"buffer_load_dwordx4 {vr(vHv + 1)}, {sd(dW4)}, s{sT5} offen offset:1024 lds", at(n + 1), w=tg)
            e(f"buffer_load_dwordx4 {vr(vHv + 2)}, {sd(dWS)}, s{sT6} offen offset:2048 sc1 lds", at(n + 2), w=tg)
            e(f"buffer_load_dwordx4 {vr(vHv + 3)}, {sd(dWS)}, s{sT6} offen offset:3072 sc1 lds", at(n + 3), w=tg)

    def oproj(self):
        P, e = self.P, self.e
        t = vT
        acc = vG
        fa = vS
        wa = vKa
        slots = [64 * K1, 0, 32 * K1, 96 * K1, 128 * K1, 64 * K1, 0, 32 * K1]
        for c in range(4):
            e(f"v_add_u32 {vr(t + c)}, {-L_V & 0xffffffff}, {vr(vVa + c)}")
        for c in range(4):
            e(f"v_mov_b32 {vr(wa + 8 + c)}, {vr(vVa + c)}")
        for c in range(4):
            e(f"v_mov_b32 {vr(wa + c)}, {vr(t + c)}")
            e(f"v_add_u32 {vr(wa + 4 + c)}, 0x10000, {vr(t + c)}")
        e(f"v_lshrrev_b32 {vr(t)}, 3, {vr(vL)}")
        e(f"v_bfe_u32 {vr(t + 1)}, {vr(vL)}, 4, 1")
        e(f"v_lshlrev_b32 {vr(t + 1)}, 2, {vr(t + 1)}")
        e(f"v_and_b32 {vr(t + 2)}, 7, {vr(vL)}")
        e(f"v_xor_b32 {vr(t + 1)}, {vr(t + 1)}, {vr(t + 2)}")
        e(f"v_lshlrev_b32 {vr(t + 1)}, 4, {vr(t + 1)}")
        e(f"v_lshl_add_u32 {vr(t)}, {vr(t)}, 10, {vr(t + 1)}")
        e(f"s_and_b32 s{sT0}, s{sKq}, 1")
        e(f"s_lshl_b32 s{sT0}, s{sT0}, 7")
        e(f"s_lshl_b32 s{sT1}, s{sCt}, 8")
        e(f"s_add_u32 s{sT0}, s{sT0}, s{sT1}")
        e(f"v_add_u32 {vr(vHv)}, s{sT0}, {vr(t)}")
        e(f"v_add_u32 {vr(vHv + 1)}, 7168, {vr(vHv)}")
        e(f"s_lshr_b32 s{sT0}, s{sKq}, 1")
        e(f"s_lshl_b32 s{sT0}, s{sT0}, 2")
        e(f"s_lshl_b32 s{sT1}, s{sR}, 3")
        e(f"s_add_u32 s{sT0}, s{sT0}, s{sT1}")
        e(f"s_add_u32 s{sRot}, s{sT0}, s{sPar}")
        e(f"s_mul_i32 s{sT0}, s{sRot}, {86 * 1024}")
        e(f"s_add_u32 s{sT0}, s{sT0}, {H3 - 2048}")
        e(f"v_add_u32 {vr(vHv + 2)}, s{sT0}, {vr(vL16)}")
        e(f"v_add_u32 {vr(vHv + 3)}, {2 * 86 * 1024 - 1024}, {vr(vHv + 2)}")
        P.barrier(vm=self.h3_st, done=["cs3"])
        e(f"s_lshl_b32 s{sT0}, s{sPar}, 7")
        e(f"s_add_u32 s{sT0}, s{sT0}, s{sCnt}")
        e(f"s_add_u32 s{sKc}, s{sT0}, {C_H3 * 128}")
        self.signal(sKc)
        self.wo_dma(4, 128 * K1, None)
        e(f"s_lshl_b32 s{sT0}, s{sKq}, 7")
        e(f"s_add_u32 s{sT0}, s{sT0}, s{sCnt}")
        e(f"s_add_u32 s{sT0}, s{sT0}, {C_O * 128}")
        e(f"v_mov_b32 {vr(t + 4)}, 0")
        self.poll_issue(vr(t + 4), dWS, f"s{sT0}")
        self.poll_check(8)
        self.stamp("owait")
        e(f"s_lshl_b32 s{sOx}, s{sTb}, 18")
        e(f"s_lshl_b32 s{sT1}, s{sKq}, 16")
        e(f"s_add_u32 s{sOx}, s{sOx}, s{sT1}")
        e(f"s_add_u32 s{sOx}, s{sOx}, {OO}")

        def bload(m, gap):
            i, n = 1 + m // 8, m % 8
            at = (lambda d=0: ("at", gap + d)) if gap is not None else (lambda d=0: None)
            if n == 0:
                e(f"s_add_u32 s{sOq}, s{sHd}, {i}", at(-2))
                e(f"s_and_b32 s{sOq}, s{sOq}, 7", at(-2))
                e(f"s_lshl_b32 s{sOq}, s{sOq}, 13", at(-1))
                e(f"s_add_u32 s{sOq}, s{sOq}, s{sOx}", at(-1))
            if n == 4:
                e(f"s_add_u32 s{sOq}, s{sOq}, 4096", at(-1))
            e(f"buffer_load_dwordx4 {ar(4 * m, 4)}, {vr(vL16)}, {sd(dWS)}, s{sOq} offen offset:{(n & 3) * 1024} sc1", at())
        NPRE = 16
        for m in range(NPRE):
            bload(m, None)

        def rd(n, gaps):
            i, ks = n >> 3, n & 7
            base = slots[i]
            ops = []
            for c in range(4):
                pos = ("at", gaps[c]) if gaps else None
                ops += self.trpair("v", fa + 16 * (n & 1) + 4 * c, wa + 4 * (base >> 16) + c, (base & 0xffff) + ks * 4096, 1024, f"wo{i}", pos)
            return ops
        rd(0, None)
        P.mark("oproj")
        g0 = P.here()
        for n in range(64):
            i, ks = n >> 3, n & 7
            g = g0 + 4 * n
            if ks == 7:
                P.barrier(("at", g), pub=[f"wo{i + 1}"] if i < 7 else ["g4_0"], done=[f"wo{i}"])
                dg = [g + 3 + 4 * k for k in range(8)]
                if i + 5 < 8:
                    self.wo_dma(i + 5, slots[i + 5], dg)
                elif i < 7:
                    self.g4_dma(i - 3, dg)
            if n < 63:
                P.wait(("at", g + 3), lg=rd(n + 1, [g, g, g + 1, g + 2] if ks != 7 else [g + 1, g + 1, g + 2, g + 2]))
            if NPRE + n < 56:
                bload(NPRE + n, g + 2)
            if n == 18:
                self.poll_issue(vr(t + 4), dWS, f"s{sKc}", ("at", g + 1))
            if n == 28:
                self.poll_check(16, ("at", g + 1))
            B = vr(vQ + 4 * ks, 4) if i == 0 else ar(4 * (n - 8), 4)
            for c in range(4):
                self.mfma(vr(acc + 16 * c, 16), vr(fa + 16 * (n & 1) + 4 * c, 4), B, "0" if n == 0 else None)
        self.stamp("oproj")
        P.mark("sst")
        self.g4_dma(4, None)
        e(f"s_lshl_b32 s{sT0}, s{sR}, 1")
        e(f"s_add_u32 s{sT0}, s{sT0}, s{sPar}")
        e(f"s_lshl_b32 s{sT0}, s{sT0}, 2")
        e(f"s_add_u32 s{sT0}, s{sT0}, s{sCt}")
        e(f"s_lshl_b32 s{sO1}, s{sT0}, 18")
        e(f"s_add_u32 s{sO1}, s{sO1}, {SP}")
        e(f"s_lshl_b32 s{sT0}, s{sKq}, 2")
        e(f"s_add_u32 s{sT0}, s{sT0}, s{sW}")
        e(f"s_lshl_b32 s{sT0}, s{sT0}, 14")
        e(f"s_add_u32 s{sT0}, s{sT0}, s{sO1}")
        self.s_st = []
        for c in range(4):
            if c:
                e(f"s_add_u32 s{sT0}, s{sT0}, 4096")
            for qd in range(4):
                self.s_st.append(e(f"buffer_store_dwordx4 {vr(acc + 16 * c + 4 * qd, 4)}, {vr(vL16)}, {sd(dWS)}, s{sT0} offen offset:{qd * 1024} sc1"))

    def g4(self):
        P, e = self.P, self.e
        t = vT
        acc = vQ
        fr = vS
        aa, ab = vKa, vKa + 3
        sp = vQ + 16
        e(f"v_bfe_u32 {vr(t)}, {vr(vW64)}, 6, 4")
        e(f"v_and_b32 {vr(t + 1)}, 63, {vr(vW64)}")
        e(f"v_lshl_add_u32 {vr(t + 1)}, {vr(t)}, 7, {vr(t + 1)}")
        e(f"v_bfe_u32 {vr(t)}, {vr(t)}, 1, 1")
        e(f"s_and_b32 s{sT0}, s{sW}, 1")
        e(f"v_xor_b32 {vr(t)}, s{sT0}, {vr(t)}")
        e(f"v_lshl_add_u32 {vr(aa)}, {vr(t)}, 6, {vr(t + 1)}")
        e(f"s_lshr_b32 s{sT1}, s{sW}, 1")
        e(f"s_lshl_b32 s{sT2}, s{sT1}, 10")
        e(f"s_add_u32 s{sT2}, s{sT2}, 2048")
        e(f"v_add_u32 {vr(ab)}, s{sT2}, {vr(vL16)}")
        for k in (1, 2):
            e(f"v_add_u32 {vr(aa + k)}, {k * 0x10000}, {vr(aa)}")
            e(f"v_add_u32 {vr(ab + k)}, {k * 0x10000}, {vr(ab)}")
        e(f"s_lshl_b32 s{sT1}, s{sT1}, 1")
        e(f"s_add_u32 s{sTk}, s{sRot}, s{sT1}")
        e(f"s_and_b32 s{sT1}, s{sKq}, 1")
        e(f"s_lshl_b32 s{sT1}, s{sT1}, 1")
        e(f"s_add_u32 s{sT1}, s{sT1}, s{sT0}")
        e(f"s_lshl_b32 s{sTv}, s{sCt}, 2")
        e(f"s_add_u32 s{sTv}, s{sTv}, s{sT1}")
        e(f"s_lshl_b32 s{sT1}, s{sT1}, 12")
        e(f"s_add_u32 s{sO1}, s{sO1}, s{sT1}")
        e(f"s_and_b32 s{sT1}, s{sKq}, 2")
        e(f"s_lshr_b32 s{sT2}, s{sW}, 1")
        e(f"s_add_u32 s{sT1}, s{sT1}, s{sT2}")
        e(f"s_lshl_b32 s{sT1}, s{sT1}, 14")
        e(f"s_add_u32 s{sO1}, s{sO1}, s{sT1}")
        e(f"v_and_b32 {vr(t)}, 31, {vr(vL)}")
        e(f"v_lshrrev_b32 {vr(t + 1)}, 5, {vr(vL)}")
        e(f"v_lshlrev_b32 {vr(t + 1)}, 4, {vr(t + 1)}")
        e(f"v_lshl_add_u32 {vr(vDt)}, {vr(t)}, 10, {vr(t + 1)}")
        e(f"s_lshl_b32 s{sOx}, s{sTk}, 15")
        e(f"s_lshl_b32 s{sT1}, s{sTv}, 6")
        e(f"s_add_u32 s{sT2}, s{sOx}, s{sT1}")
        e(f"s_lshl_b32 s{sT1}, s{sTv}, 11")
        e(f"s_add_u32 s{sT3}, s{sOx}, s{sT1}")
        e(f"s_mov_b32 s{sOx}, s{sT2}")
        e(f"s_add_u32 s{sT3}, s{sT3}, {X1}")
        for i in range(2):
            e(f"buffer_load_dwordx4 {vr(vXt + 4 * i, 4)}, {vr(vDt)}, {sd(dX)}, s{sOx} offen offset:{32 * i}")
            e(f"buffer_load_dwordx4 {vr(vSt + 4 * i, 4)}, {vr(vL16)}, {sd(dWS)}, s{sT3} offen offset:{1024 * i} sc1")
        e(f"s_lshl_b32 s{sT0}, s{sPar}, 2")
        e(f"s_add_u32 s{sT0}, s{sT0}, s{sCt}")
        e(f"s_lshl_b32 s{sT0}, s{sT0}, 7")
        e(f"s_add_u32 s{sT0}, s{sT0}, s{sCnt}")
        e(f"s_add_u32 s{sKc}, s{sT0}, {C_S * 128}")
        LA = 3

        def rd(n, gap):
            c, k8 = n >> 3, n & 7
            base = self.G4SLOT[c % 5]
            pos = ("at", gap) if gap is not None else None
            f = fr + 8 * (n & 3)
            ops = self.trpair("v", f, aa + (base >> 16), (base & 0xffff) + k8 * 4096, 512, f"g4_{c}", pos)
            ops.append(e(f"ds_read_b128 {vr(f + 4, 4)}, {vr(ab + (base >> 16))} offset:{(base & 0xffff) + k8 * 4096}", pos, r=f"g4_{c}"))
            return ops
        reads = {n: rd(n, None) for n in range(LA)}
        P.mark("g4")
        g0 = P.here()
        SIG = 4
        for n in range(86):
            g = g0 + n
            m = n + LA
            if m < 86:
                if m % 8 == 0:
                    c = m >> 3
                    P.barrier(("at", g), pub=[f"g4_{c}"], done=[f"g4_{c - 1}"], vm=self.s_st if c == SIG else [])
                    if c == SIG:
                        self.signal(sKc, ("at", g + 1))
                    if c + 4 < 11:
                        self.g4_dma(c + 4, [g + 1 + k for k in range(8)])
                reads[m] = rd(m, g)
            if n + 1 < 86:
                P.wait(("at", g), lg=reads[n + 1])
            if n == 66:
                self.poll_issue(vr(t + 4), dWS, f"s{sKc}", ("at", g))
            f = fr + 8 * (n & 3)
            self.mfma(vr(acc, 16), vr(f, 4), vr(f + 4, 4), "0" if n == 0 else None)
        P.mark("final")
        self.poll_check(4)
        self.stamp("g4")
        sp = vG
        for src in range(4):
            if src:
                e(f"s_add_u32 s{sO1}, s{sO1}, 0x10000")
            for qd in range(4):
                e(f"buffer_load_dwordx4 {vr(sp + 16 * src + 4 * qd, 4)}, {vr(vL16)}, {sd(dWS)}, s{sO1} offen offset:{qd * 1024} sc1")
        for r in range(8):
            a = acc + 2 * r
            tt = t + 6 + 2 * (r & 1)
            e(f"v_lshlrev_b32 {vr(tt)}, 16, {vr(vSt + r)}")
            e(f"v_and_b32 {vr(tt + 1)}, 0xffff0000, {vr(vSt + r)}")
            e(f"v_add_f32 {vr(a)}, {vr(a)}, {vr(tt)}")
            e(f"v_add_f32 {vr(a + 1)}, {vr(a + 1)}, {vr(tt + 1)}")
            e(f"v_mul_f32 {vr(tt)}, {fhex(-LOG2E)}, {vr(a)}")
            e(f"v_mul_f32 {vr(tt + 1)}, {fhex(-LOG2E)}, {vr(a + 1)}")
            e(f"v_exp_f32 {vr(tt)}, {vr(tt)}")
            e(f"v_exp_f32 {vr(tt + 1)}, {vr(tt + 1)}")
            e(f"v_add_f32 {vr(tt)}, 1.0, {vr(tt)}")
            e(f"v_add_f32 {vr(tt + 1)}, 1.0, {vr(tt + 1)}")
            e(f"v_rcp_f32 {vr(tt)}, {vr(tt)}")
            e(f"v_rcp_f32 {vr(tt + 1)}, {vr(tt + 1)}")
            e(f"v_mul_f32 {vr(a)}, {vr(a)}, {vr(tt)}")
            e(f"v_mul_f32 {vr(a + 1)}, {vr(a + 1)}, {vr(tt + 1)}")
        for r in range(16):
            e(f"v_add_f32 {vr(sp + r)}, {vr(sp + r)}, {vr(sp + 16 + r)}")
        for r in range(16):
            e(f"v_add_f32 {vr(sp + 32 + r)}, {vr(sp + 32 + r)}, {vr(sp + 48 + r)}")
        for r in range(8):
            a = acc + 2 * r
            tt = t + 6 + 2 * (r & 1)
            e(f"v_add_f32 {vr(sp + 2 * r)}, {vr(sp + 2 * r)}, {vr(sp + 32 + 2 * r)}")
            e(f"v_add_f32 {vr(sp + 2 * r + 1)}, {vr(sp + 2 * r + 1)}, {vr(sp + 33 + 2 * r)}")
            e(f"v_lshlrev_b32 {vr(tt)}, 16, {vr(vXt + r)}")
            e(f"v_and_b32 {vr(tt + 1)}, 0xffff0000, {vr(vXt + r)}")
            e(f"v_fmac_f32 {vr(tt)}, {vr(sp + 2 * r)}, {vr(a)}")
            e(f"v_fmac_f32 {vr(tt + 1)}, {vr(sp + 2 * r + 1)}, {vr(a + 1)}")
            e(f"v_cvt_pk_bf16_f32 {vr(vS + r)}, {vr(tt)}, {vr(tt + 1)}")
            if r & 3 == 3:
                e(f"buffer_store_dwordx4 {vr(vS + r - 3, 4)}, {vr(vDt)}, {sd(dOUT)}, s{sOx} offen offset:{32 * (r >> 2)}")
        self.stamp("end")

    def dump_stamps(self):
        if not self.prof:
            return
        e = self.e
        e("s_waitcnt vmcnt(0)")
        e(f"s_memrealtime s[{dK}:{dK + 1}]")
        e(f"s_memtime s[{dV}:{dV + 1}]")
        e("s_waitcnt lgkmcnt(0)")
        e(f"s_lshl_b32 s{sT0}, s2, 2")
        e(f"s_add_u32 s{sT0}, s{sT0}, s{sW}")
        e(f"s_lshl_b32 s{sT0}, s{sT0}, 6")
        e(f"s_add_u32 s{sT0}, s{sT0}, {PROF}")
        e(f"v_mov_b32 {vr(vT)}, 0")
        for k in range(self.nstamp):
            e(f"v_mov_b32 {vr(vT + 1)}, s{STAMPS[k]}")
            e(f"buffer_store_dword {vr(vT + 1)}, {vr(vT)}, {sd(dWS)}, s{sT0} offen offset:{4 * k}")
        for k, sr in [(12, 98), (13, dK), (14, 100), (15, dV)]:
            e(f"v_mov_b32 {vr(vT + 1)}, s{sr}")
            e(f"buffer_store_dword {vr(vT + 1)}, {vr(vT)}, {sd(dWS)}, s{sT0} offen offset:{4 * k}")

    def build(self):
        P = self.P
        steps = [("pro", self.prologue), ("qproj", self.qproj), ("attn", self.attention), ("oepi", self.o_epilogue),
                 ("g3", self.g3), ("oproj", self.oproj), ("g4", self.g4)]
        for name, fn in steps:
            fn()
            if self.stop == name:
                break
        self.dump_stamps()
        P.b("s_waitcnt vmcnt(0)")
        P.schedule()
        P.verify()
        P.finalize()
        body = P.text(comments=True)
        names = dict(x=dX, k=dK, v=dV, wq=dWQ, wo=dWO, w1=dW1, w2=dW2, w3=dW3, w4=dW4)
        for nm in self.o.get("nt", []):
            body = re.sub(r"(buffer_load_dwordx4 [^\n]*%s[^\n]*?offen(?: offset:\d+)?)" % re.escape(sd(names[nm])), r"\1 nt", body)
        nbytes = sum(i.size for i in P.final)
        code_bytes = (nbytes + 255) // 256 * 256
        body = body.replace("CODE_BYTES", str(code_bytes))
        hdr = open(os.path.join(os.path.dirname(os.path.abspath(__file__)), "header.txt")).read()
        return f"""{hdr}; @launch grid=(256,1,1) block=(256,1,1) lds=163840
.amdgcn_target "amdgcn-amd-amdhsa--gfx950"
.text
.globl {KNAME}
.p2align 8
.type {KNAME},@function
{KNAME}:
{body}L_end:
    s_endpgm
{''.join(P.ool)}
.section .rodata,"a"
.p2align 6
.amdhsa_kernel {KNAME}
  .amdhsa_next_free_vgpr 512
  .amdhsa_next_free_sgpr 102
  .amdhsa_accum_offset 256
  .amdhsa_group_segment_fixed_size 0
  .amdhsa_kernarg_size 104
  .amdhsa_user_sgpr_count 2
  .amdhsa_user_sgpr_kernarg_segment_ptr 1
  .amdhsa_system_sgpr_workgroup_id_x 1
  .amdhsa_float_denorm_mode_32 3
.end_amdhsa_kernel
"""


if __name__ == "__main__":
    import argparse, json
    ap = argparse.ArgumentParser()
    ap.add_argument("-o", default="recurrent_scan__sliding_block_cached__mixer_s_mlp__prompt.s")
    ap.add_argument("--prof", action="store_true")
    ap.add_argument("--stop")
    ap.add_argument("--opts", default="{}")
    a = ap.parse_args()
    g = Gen(a.prof, a.stop, json.loads(a.opts))
    txt = g.build()
    open(a.o, "w").write(txt)
    g.P.estimate([m for m in g.P.marks])
    if a.prof:
        print("stamps:", g.stamp_names)
```

```python
import re
from collections import defaultdict

REG_RE = re.compile(r"^-?\|?([vas])(\d+)\|?$")
RNG_RE = re.compile(r"^-?([vas])\[(\d+):(\d+)\]$")


def regs_of(tok):
    tok = tok.strip()
    if tok.startswith("abs(") and tok.endswith(")"):
        tok = tok[4:-1]
    m = REG_RE.match(tok)
    if m:
        return [m.group(1) + m.group(2)]
    m = RNG_RE.match(tok)
    if m:
        return [m.group(1) + str(i) for i in range(int(m.group(2)), int(m.group(3)) + 1)]
    if tok in ("vcc", "m0", "exec", "scc"):
        return [tok]
    if tok in ("vcc_lo", "vcc_hi"):
        return ["vcc"]
    if tok in ("exec_lo", "exec_hi"):
        return ["exec"]
    return []


TRANS = ("v_exp_f32", "v_log_f32", "v_rcp_f32", "v_rsq_f32", "v_sqrt_f32", "v_sin_f32", "v_cos_f32")
INLINE_F = {"0.5", "-0.5", "1.0", "-1.0", "2.0", "-2.0", "4.0", "-4.0"}
VOP3_ONLY = ("v_fma_f32", "v_add3_u32", "v_lshl_add_u32", "v_add_lshl_u32", "v_and_or_b32", "v_mul_lo_u32",
             "v_mul_hi_u32", "v_mad_u32_u24", "v_max3_f32", "v_min3_f32", "v_med3_f32", "v_bfe_u32", "v_bfi_b32",
             "v_cvt_pk_bf16_f32", "v_accvgpr_read_b32", "v_accvgpr_write_b32", "v_lshl_or_b32", "v_or3_b32",
             "v_perm_b32", "v_xad_u32", "v_readlane_b32", "v_writelane_b32", "v_mbcnt_lo_u32_b32",
             "v_mbcnt_hi_u32_b32", "v_bitop3_b32", "v_alignbit_b32", "v_ldexp_f32", "v_dot2_f32_bf16")


def is_literal(tok):
    tok = tok.strip()
    if tok in INLINE_F:
        return False
    try:
        v = int(tok, 0)
        return not (-16 <= v <= 64)
    except ValueError:
        pass
    try:
        float(tok)
        return True
    except ValueError:
        return False


class Ins:
    __slots__ = ("text", "op", "kind", "rd", "wr", "cost", "size", "lid", "ltag_r", "ltag_w", "wait_vm", "wait_lg",
                 "pub", "gap", "cls", "note", "mf_c", "mf_ab", "label")

    def __init__(self, text, ltag_r=None, ltag_w=None):
        self.text = text
        self.ltag_r = ltag_r
        self.ltag_w = ltag_w
        self.wait_vm = []
        self.wait_lg = []
        self.pub = []
        self.gap = None
        self.cls = None
        self.note = ""
        self.mf_c = []
        self.mf_ab = []
        self.label = None
        self.lid = -1
        self._parse()

    def _parse(self):
        t = self.text.strip()
        rd, wr = [], []
        if t.endswith(":"):
            self.op, self.kind, self.cost, self.size = "label", "label", 0, 0
            self.rd, self.wr = [], []
            return
        sp = t.split(None, 1)
        op = sp[0]
        rest = sp[1] if len(sp) > 1 else ""
        self.op = op
        base = re.sub(r"_(e32|e64|dpp|sdwa)$", "", op)
        parts = [p.strip() for p in rest.split(",")] if rest else []
        mods = ""
        if parts:
            last = parts[-1].split(None, 1)
            parts[-1] = last[0]
            mods = last[1] if len(last) > 1 else ""
        R = [regs_of(p) for p in parts]
        flat = lambda xs: [r for x in xs for r in x]
        size = 4
        if base.startswith("v_mfma"):
            kind, cost, size = "mfma", 8, 8
            wr = R[0]
            rd = flat(R[1:])
            self.mf_c = R[3]
            self.mf_ab = R[1] + R[2]
        elif base.startswith("ds_read"):
            kind, cost, size = "dsr", 4, 8
            wr, rd = R[0], flat(R[1:])
        elif base.startswith("ds_write") or base.startswith("ds_or_b32") or base.startswith("ds_add_u32"):
            kind, cost, size = "dsw", (24 if "b128" in base else 8), 8
            rd = flat(R)
        elif base.startswith("buffer_load"):
            size = 8
            if re.search(r"\blds\b", mods):
                kind, cost = "dma", 8
                rd = flat(R) + ["m0"]
            else:
                kind, cost = "vld", 8
                wr, rd = R[0], flat(R[1:])
        elif base.startswith("buffer_store"):
            kind, cost, size = "vst", (16 if "x4" in base else 8), 8
            rd = flat(R)
        elif base.startswith("buffer_atomic"):
            kind, cost, size = "vat", 8, 8
            rd = flat(R)
            assert "sc0" not in mods.split()
        elif base in ("buffer_inv", "buffer_wbl2"):
            kind, cost, size = "vat", 8, 8
        elif base.startswith("s_load") or base in ("s_memtime", "s_memrealtime"):
            kind, cost, size = "smem", 4, 8
            wr, rd = R[0], flat(R[1:])
        elif base == "s_waitcnt":
            kind, cost = "wait", 4
        elif base == "s_barrier":
            kind, cost = "barrier", 4
        elif base == "s_nop":
            kind, cost = "nop", 4 * (int(parts[0]) + 1)
        elif base in ("s_branch", "s_endpgm", "s_sleep", "s_setprio"):
            kind, cost = "branch", 4
        elif base.startswith("s_cbranch"):
            kind, cost = "branch", 4
            rd = ["scc"] if "scc" in base else (["vcc"] if "vcc" in base else ["exec"])
        elif base.startswith("s_cmp") or base.startswith("s_bitcmp"):
            kind, cost = "salu", 4
            rd, wr = flat(R), ["scc"]
        elif base.startswith("s_"):
            kind, cost = "salu", 4
            wr, rd = list(R[0]), flat(R[1:])
            if base in ("s_addk_i32", "s_mulk_i32"):
                rd += R[0]
            if base.startswith("s_cselect") or base in ("s_addc_u32", "s_subb_u32"):
                rd.append("scc")
            if not (base.startswith("s_mov") or base.startswith("s_cselect") or base in ("s_mul_i32", "s_mul_hi_u32", "s_getpc_b64", "s_mulk_i32", "s_getreg_b32")):
                wr.append("scc")
            if "saveexec" in base:
                wr.append("exec")
                rd.append("exec")
        elif base.startswith("v_"):
            kind, cost = "valu", 4
            if base in TRANS:
                kind, cost = "trans", 8
            if base.startswith("v_permlane"):
                kind, cost = "perm", 8
                wr, rd = flat(R), flat(R)
            elif base.startswith("v_cmp"):
                wr, rd = R[0], flat(R[1:])
            else:
                wr, rd = list(R[0]), flat(R[1:])
                if base in ("v_fmac_f32",) or op.endswith("_dpp") or base == "v_writelane_b32":
                    rd += R[0]
                if base in ("v_add_co_u32", "v_addc_co_u32"):
                    wr += R[1]
            if op.endswith("_dpp") or op.endswith("_sdwa") or op.endswith("_e64") or base in VOP3_ONLY:
                size = 8
            elif base == "v_cndmask_b32" and parts[3] != "vcc":
                size = 8
            elif base.startswith("v_cmp") and parts[0] != "vcc":
                size = 8
            elif len(parts) >= 3 and not parts[2].lstrip("-").startswith("v") and not base.startswith("v_permlane"):
                size = 8
            elif any(p.startswith("-") and regs_of(p) for p in parts[1:]):
                size = 8
            rd.append("exec")
        else:
            raise ValueError("unknown op " + t)
        if size == 4 and kind in ("valu", "trans", "salu") and base not in ("s_movk_i32", "s_addk_i32", "s_mulk_i32") \
                and not base.startswith("s_cmpk"):
            if any(is_literal(p) for p in parts[1:]) or (base.startswith("s_cmp") and any(is_literal(p) for p in parts)):
                size = 8
        if kind in ("mfma", "dsr", "dsw", "dma", "vld", "vst", "vat"):
            rd = rd + ["exec"]
        self.kind, self.cost, self.size = kind, cost, size
        self.rd, self.wr = rd, wr


VM_KINDS = ("dma", "vld", "vst", "vat")
LG_KINDS = ("dsr", "dsw", "smem")
VALU_KINDS = ("valu", "trans", "perm")


class Tag:
    def __init__(self, name, lo, hi, shared):
        self.name, self.lo, self.hi, self.shared = name, lo, hi, shared
        self.writers = []
        self.readers = []


class Prog:
    def __init__(self):
        self.ins = []
        self.back = []
        self.fill = []
        self.marks = {}
        self.tags = {}
        self.ool = []
        self.warn = []
        self.nlabel = 0

    def tag(self, name, lo, hi, shared=True):
        assert name not in self.tags, name
        assert 0 <= lo < hi <= 163840, (name, lo, hi)
        t = Tag(name, lo, hi, shared)
        self.tags[name] = t
        return name

    def _mk(self, text, r=None, w=None):
        i = Ins(text, r, w)
        i.lid = len(self.ins)
        self.ins.append(i)
        if r:
            self.tags[r].readers.append(i)
        if w:
            self.tags[w].writers.append(i)
        return i

    def mark(self, name):
        assert name not in self.marks, name
        self.marks[name] = len(self.back)

    def here(self):
        return len(self.back)

    def b(self, text, r=None, w=None):
        i = self._mk(text, r, w)
        self.back.append(i)
        return i

    def f(self, text, at=None, after=None, stream=None, r=None, w=None, dl=None):
        i = self._mk(text, r, w)
        self.fill.append((i, at, after, stream, dl))
        return i

    def emit(self, text, pos=None, r=None, w=None):
        if pos is None:
            return self.b(text, r, w)
        if pos[0] == "at":
            return self.f(text, at=pos[1], r=r, w=w)
        return self.f(text, after=pos[2], stream=pos[1], r=r, w=w, dl=pos[3] if len(pos) > 3 else None)

    def wait(self, pos=None, vm=(), lg=()):
        i = self.emit("s_waitcnt auto", pos)
        i.wait_vm = list(vm)
        i.wait_lg = list(lg)
        return i

    def barrier(self, pos=None, pub=(), vm=(), lg=(), done=()):
        i = self.emit("s_barrier", pos)
        i.pub = list(pub)
        i.wait_vm = list(vm)
        i.wait_lg = list(lg)
        for t in pub:
            for w in self.tags[t].writers:
                (i.wait_vm if w.kind == "dma" else i.wait_lg).append(w)
        for t in done:
            i.wait_lg += list(self.tags[t].readers)
        return i

    def label(self, stem):
        self.nlabel += 1
        return f"L_{stem}_{self.nlabel}"

    def _g(self, g):
        if isinstance(g, tuple):
            return self.marks[g[0]] + g[1]
        return g

    def schedule(self, budget=24):
        nb = len(self.back)
        pre = [[] for _ in range(nb)]
        mem = [[] for _ in range(nb)]
        val = [[] for _ in range(nb)]
        left = [budget if i.kind == "mfma" else 0 for i in self.back]
        shadow = [i.kind == "mfma" for i in self.back]

        def put(i, g):
            g = max(0, min(g, nb - 1))
            i.gap = g
            if i.kind in VALU_KINDS or (i.kind == "branch"):
                val[g].append(i)
                left[g] -= i.cost
            elif i.kind in ("salu", "wait", "nop"):
                mem[g].append(i)
                if shadow[g]:
                    shadow[g] = False
                else:
                    left[g] -= i.cost
            else:
                mem[g].append(i)
                left[g] -= i.cost

        for (i, at, after, stream, dl) in self.fill:
            if at is not None:
                put(i, self._g(at))
        last = {}
        for g, i in enumerate(self.back):
            i.gap = g
        prod, _ = self._producers(self.ins)
        for (i, at, after, stream, dl) in self.fill:
            if at is not None:
                continue
            g = max(self._g(after), last.get(stream, 0))
            for r in i.rd:
                pl = prod[(i.lid, r)]
                if pl < 0 or r in ("exec", "scc"):
                    continue
                p = self.ins[pl]
                if p.gap is None:
                    continue
                if p.kind == "mfma":
                    g = max(g, p.gap + 3)
                elif p.kind in VALU_KINDS and i.kind not in VALU_KINDS:
                    g = max(g, p.gap + 1)
                else:
                    g = max(g, p.gap)
            lim = self._g(dl) if dl is not None else nb - 1
            isval = i.kind in VALU_KINDS or i.kind == "branch"
            pv = last.get(("v", stream))
            if not isval and pv is not None and pv >= g:
                g = pv + 1
            while g < lim and (left[g] < i.cost and not (i.kind in ("salu", "wait") and shadow[g])):
                g += 1
            g = min(g, lim)
            put(i, g)
            last[stream] = g
            if isval:
                last[("v", stream)] = g
        out = []
        for g, i in enumerate(self.back):
            out.append(i)
            i.gap = g
            m = mem[g]
            out += sorted(m, key=lambda x: x.lid) + sorted(val[g], key=lambda x: x.lid)
        self.order = out
        self.left = left
        return out

    @staticmethod
    def _producers(seq):
        lastw = {}
        prod = {}
        for i in seq:
            for r in i.rd:
                prod[(i.lid, r)] = lastw.get(r, -1)
            for r in i.wr:
                lastw[r] = i.lid
        return prod, lastw

    def verify(self):
        p0, l0 = self._producers(self.ins)
        p1, l1 = self._producers(self.order)
        bad = 0
        seen = set()
        for k, v in p0.items():
            if p1[k] != v:
                bad += 1
                if k[0] not in seen and len(seen) < 12:
                    seen.add(k[0])
                    a = self.ins[k[0]]
                    print(f"DEP ERROR: [{a.lid}] gap {a.gap} '{a.text}' reads {k[1]}: logical producer "
                          f"{self.ins[v].text if v >= 0 else None} (gap {self.ins[v].gap if v >= 0 else None}) but scheduled producer "
                          f"{self.ins[p1[k]].text if p1[k] >= 0 else None} (gap {self.ins[p1[k]].gap if p1[k] >= 0 else None})")
        assert bad == 0, f"{bad} dependency errors"

    def finalize(self):
        out = []
        vm, lg = [], []
        pend = {}
        done_at = {}
        pos_of = {}
        self.auto_waits = 0
        self.auto_nops = 0
        barriers = []
        published = {}

        def need(lst, ops):
            idx = -1
            ids = {o.lid for o in ops}
            for n, o in enumerate(lst):
                if o.lid in ids:
                    idx = n
            return idx

        def retire(lst, idx):
            for o in lst[:idx + 1]:
                done_at[o.lid] = len(out)
                for r in o.wr:
                    if pend.get(r) is o:
                        del pend[r]
            del lst[:idx + 1]

        for i in self.order:
            wv, wl = list(i.wait_vm), list(i.wait_lg)
            for o in wv + wl:
                assert o.lid in pos_of, f"wait on op not yet issued: {o.text} (gap {o.gap}) at gap {i.gap}"
            for r in list(i.rd) + list(i.wr):
                o = pend.get(r)
                if o is not None:
                    (wv if o.kind in VM_KINDS else wl).append(o)
            if i.ltag_r:
                t = self.tags[i.ltag_r]
                for w in t.writers:
                    assert w.lid in pos_of, f"LDS read of {t.name} before its writer issued: {i.text} gap {i.gap}"
                if t.shared:
                    assert t.name in published, f"LDS read of unpublished {t.name}: {i.text} gap {i.gap}"
                else:
                    for w in t.writers:
                        (wv if w.kind == "dma" else wl).append(w)
            if i.ltag_w:
                t = self.tags[i.ltag_w]
                for o in self.tags.values():
                    if o is t or o.hi <= t.lo or t.hi <= o.lo:
                        continue
                    if not o.writers or o.writers[0].lid > i.lid:
                        continue
                    acc = o.readers + o.writers
                    if o.shared or t.shared:
                        for a in acc:
                            assert a.lid in done_at, f"LDS WAR: {t.name} overwrites {o.name}; {a.text} (gap {a.gap}) not complete at gap {i.gap}"
                        lastdone = max(done_at[a.lid] for a in acc)
                        assert barriers and barriers[-1] >= lastdone, f"LDS WAR: {t.name} over {o.name} without barrier (gap {i.gap})"
                    else:
                        for a in acc:
                            assert a.lid in pos_of
                            (wv if a.kind == "dma" else wl).append(a)
            if i.kind in VM_KINDS and len(vm) >= 63:
                self.warn.append(f"vmcnt would exceed 63 at gap {i.gap}")
                wv.append(vm[len(vm) - 63])
            iv, il = need(vm, wv), need(lg, wl)
            if il >= 0 and any(o.kind == "smem" for o in lg):
                il = len(lg) - 1
            if iv >= 0 or il >= 0:
                s = "s_waitcnt"
                if iv >= 0:
                    s += f" vmcnt({len(vm) - 1 - iv})"
                if il >= 0:
                    n = len(lg) - 1 - il
                    if n > 15:
                        n = 15
                        il = len(lg) - 1 - 15
                    s += f" lgkmcnt({n})"
                w = Ins(s)
                w.gap = i.gap
                if i.kind != "wait":
                    w.note = "auto"
                    self.auto_waits += 1
                out.append(w)
                if iv >= 0:
                    retire(vm, iv)
                if il >= 0:
                    retire(lg, il)
            if i.kind == "wait":
                if i.text != "s_waitcnt auto":
                    out.append(i)
                    m = re.search(r"vmcnt\((\d+)\)", i.text)
                    if m and len(vm) > int(m.group(1)):
                        retire(vm, len(vm) - 1 - int(m.group(1)))
                    m = re.search(r"lgkmcnt\((\d+)\)", i.text)
                    if m and len(lg) > int(m.group(1)):
                        retire(lg, len(lg) - 1 - int(m.group(1)))
                continue
            n = self._hazard(out, i)
            if n > 0:
                self.auto_nops += n
                w = Ins(f"s_nop {n - 1}")
                w.gap = i.gap
                w.note = "hazard"
                out.append(w)
            pos_of[i.lid] = len(out)
            out.append(i)
            if i.kind == "barrier":
                barriers.append(len(out) - 1)
                for t in i.pub:
                    published[t] = True
            if i.kind in VM_KINDS:
                vm.append(i)
                if len(vm) > 63:
                    self.warn.append(f"vmcnt > 63 at gap {i.gap}")
            if i.kind in LG_KINDS:
                lg.append(i)
            if i.kind in ("vld", "dsr", "smem"):
                for r in i.wr:
                    pend[r] = i
        self.final = out
        return out

    @staticmethod
    def _states(i):
        if i.kind == "nop":
            return int(i.text.split()[1]) + 1
        if i.kind == "label":
            return 0
        return 1

    def _hazard(self, out, i):
        need = 0
        dist = 0
        rd, wr = set(i.rd), set(i.wr)
        isv = i.kind in VALU_KINDS
        base = re.sub(r"_(e32|e64|dpp|sdwa)$", "", i.op)
        for p in reversed(out):
            if dist >= 13:
                break
            req = 0
            pw = set(p.wr)
            pv = p.kind in VALU_KINDS
            vw = {r for r in pw if r[0] in "va" and r != "vcc"}
            sw = {r for r in pw if (r[0] == "s" and r != "scc") or r == "vcc"}
            if p.kind == "mfma":
                if i.kind == "mfma":
                    if pw & set(i.mf_ab):
                        req = 12
                    elif pw & set(i.mf_c) and list(p.wr) != list(i.mf_c):
                        req = 10
                    elif pw & wr and not (list(p.wr) == list(i.mf_c)):
                        req = max(req, 10)
                elif pw & (rd | wr):
                    req = 12
                if isv and set(p.mf_c) & wr:
                    req = max(req, 7)
            if pv:
                if i.kind == "mfma" and vw & rd:
                    req = max(req, 2)
                if i.kind == "perm" and vw & rd:
                    req = max(req, 2)
                if i.op.endswith("_dpp") and vw & rd:
                    req = max(req, 2)
                if base in ("v_readfirstlane_b32", "v_readlane_b32") and vw & rd:
                    req = max(req, 1)
                if isv and sw & rd:
                    req = max(req, 2)
                if i.kind in VM_KINDS and sw & rd:
                    req = max(req, 5)
                if i.kind == "salu" and sw & rd:
                    req = max(req, 2)
                if p.kind == "trans" and isv and i.kind != "trans" and vw & rd:
                    req = max(req, 1)
                if p.op.endswith("_sdwa") and isv and vw & (rd | wr):
                    req = max(req, 1)
            if p.kind == "salu" and "m0" in pw and i.kind == "dma":
                req = max(req, 1)
            if p.kind == "vst" and ("x4" in p.op or "x3" in p.op):
                data = set(regs_of(p.text.split(None, 1)[1].split(",")[0]))
                if data & wr:
                    req = max(req, 2)
            if p.kind == "dsw" and ("b128" in p.op or "b96" in p.op) and set(p.rd) & wr:
                req = max(req, 2)
            need = max(need, req - dist)
            dist += self._states(p)
        return need

    def estimate(self, names):
        cyc = defaultdict(int)
        over = defaultdict(int)
        nm = defaultdict(int)
        ms = sorted((self.marks[n], n) for n in names)

        def phase(g):
            cur = "pre"
            for m, n in ms:
                if g >= m:
                    cur = n
            return cur
        gaps = defaultdict(list)
        cur = None
        seq = []
        for i in self.final:
            if i.kind == "mfma":
                cur = [i]
                seq.append(cur)
            elif cur is not None and self.back[i.gap].kind == "mfma" and i.gap == cur[0].gap or (cur is not None and i.note and self.back[max(i.gap - 1, 0)] is cur[0]):
                cur.append(i)
            else:
                cur = None
                seq.append([i])
        for s in seq:
            ph = phase(s[0].gap)
            if s[0].kind == "mfma":
                c = 8
                prevv = False
                for k, i in enumerate(s[1:]):
                    cc = i.cost
                    if k == 0 and i.kind in ("salu", "wait", "nop"):
                        cc -= 4
                    if prevv and i.kind in ("dsr", "dsw") + VM_KINDS:
                        cc += 8
                    prevv = i.kind in VALU_KINDS
                    c += cc
                if c > 32:
                    over[ph] += c - 32
                cyc[ph] += max(32, c)
                nm[ph] += 1
            else:
                cyc[ph] += s[0].cost
        tot = 0
        for m, n in [(0, "pre")] + ms:
            print(f"  {n:10s} est {cyc[n]:6d} cyc  mfma {nm[n]:4d}  overflow {over[n]}")
            tot += cyc[n]
        print(f"  total est {tot}; bytes {sum(i.size for i in self.final)}; auto waits {self.auto_waits}, hazard nop states {self.auto_nops}")
        for w in self.warn[:10]:
            print("  WARN", w)

    def text(self, comments=False):
        L = []
        for i in self.final:
            t = i.text
            if comments and i.note:
                t += "  ; " + i.note
            L.append(t if i.kind == "label" else "    " + t)
        return "\n".join(L) + "\n"
```

```python
import math, struct, sys, os, re
sys.path.insert(0, os.path.dirname(os.path.abspath(__file__)))
from asmgen import Prog

KNAME = "recurrent_scan__sliding_block_cached__mixer_s_mlp__prompt_kernel"
K1 = 1024
OOB = 0x80000000

CNT = 0x0
STATS = 0x10000
X1ST = 0x20000
PROF = 0x80000
H = 0x100000
X1 = 0x300000
H3 = 0x500000
OO = 0x1000000
SP = 0x2000000
WS_BYTES = 0x3000000
C_ST, C_H, C_X1, C_H3, C_O, C_S = 0, 1, 2, 4, 6, 10

sR, sHd, sW, sPar, sCb, sKq, sCt, sRot, sTb = 3, 4, 5, 6, 7, 8, 9, 10, 11
sOx, sOq, sO1, sKc = 12, 13, 14, 15
sMx, sMq, sM1, sMk, sMv = 16, 17, 18, 19, 20
sTk, sTv, sCnt = 21, 22, 23
sT0, sT1, sSpin, sT2, sT3, sT4, sT5, sT6 = 24, 25, 26, 27, 28, 29, 30, 31
sU0, sU1, sU2, sU3, sU4, sU5, sU6, sU7 = range(90, 98)
dX, dK, dV, dWQ, dWO, dW1, dW2, dW3, dW4, dOUT, dDBG, dWS, dH, dCODE = [32 + 4 * i for i in range(14)]
STAMPS = list(range(84, 97, 2)) + [0, 72, 74, 44, 46, 52, 54]

vL = 0
vKa = 1
vVa = 9
vKd = 13
vVd = 15
vLs = 16
vSt = 20
vXt = 28
vHv = 36
vDt = 40
vW64 = 44
vL16 = 46
vPoll = 47
vT = 48
vG = 64
vA0 = 96
vC1 = 104
vCs = 108
vGa = 112
vQ = 128
vS = 192
vP = 224
vSig = 63
vOne = 62
vTr = 60
vGc = 61

L_X, L_WQ, L_W1, L_SCR = 0, 96 * K1, 144 * K1, 156 * K1
L_K, L_V = 64 * K1, 128 * K1
L_W3 = [0, 32 * K1, 96 * K1]
L_W2 = 96 * K1

LOG2E = 1.4426950408889634


def fhex(x):
    return "0x%08x" % struct.unpack("<I", struct.pack("<f", x))[0]


def vr(b, n=1):
    return f"v{b}" if n == 1 else f"v[{b}:{b + n - 1}]"


def ar(b, n=1):
    return f"a{b}" if n == 1 else f"a[{b}:{b + n - 1}]"


def sd(b):
    return f"s[{b}:{b + 3}]"


class Gen:
    def __init__(self, prof=False, stop=None, opts=None):
        self.P = Prog()
        self.prof = prof
        self.stop = stop
        self.o = dict(JG2=4, pfcode=True, npre=2, pf=True, ost=' sc1', osig=0, ssig=5, npreb=8,
                      ostg=[6, 7, 15, 16, 24, 25, 33, 34, 44, 54, 64, 74, 84, 94, 104, 114])
        if opts:
            self.o.update(opts)
        self.nstamp = 0
        self.stamp_names = []

    def e(self, t, pos=None, r=None, w=None):
        return self.P.emit(t, pos, r, w)

    def stamp(self, name, pos=None):
        if not self.prof or (self.o.get("stamps") and name not in self.o["stamps"] and name not in ("start", "end")):
            return
        k = self.nstamp
        self.nstamp += 1
        self.stamp_names.append(name)
        if k >= 2:
            self.e(f"v_writelane_b32 {vr(vTr)}, s{84 + 2 * ((k - 2) % 3)}, {k - 2}", pos)
        s = 84 + 2 * (k % 3)
        self.e(f"s_memtime s[{s}:{s + 1}]", ("at", self.add(pos[1], 1)) if pos else None)

    def poll_issue(self, voff, srd, soff, pos=None):
        self._poll = f"buffer_load_dword {vr(vPoll)}, {voff}, {sd(srd)}, {soff} offen sc1"
        return self.e(self._poll, pos)

    def poll_check(self, target, pos=None):
        P = self.P
        slow, back = P.label("spin"), P.label("back")
        cmp = f"v_cmp_gt_u32 vcc, {target}, {vr(vPoll)}"
        self.e(cmp, pos)
        br = self.e(f"s_cbranch_vccnz {slow}", pos)
        br.wr = ["scc", f"s{sSpin}"]
        i = self.e(f"{back}:", pos)
        i.kind = "branch" if pos is not None else "label"
        i.cost = 0
        i.label = True
        P.ool.append(f"""{slow}:
    s_mov_b32 s{sSpin}, 0
{slow}_l:
    s_sleep 1
    {self._poll}
    s_add_u32 s{sSpin}, s{sSpin}, 1
    s_cmp_gt_u32 s{sSpin}, 0x80000
    s_waitcnt vmcnt(0)
    s_cbranch_scc1 {back}
    {cmp}
    s_cbranch_vccnz {slow}_l
    s_branch {back}
""")

    def signal(self, idx_s, pos=None):
        return self.e(f"buffer_atomic_add {vr(vOne)}, {vr(vSig)}, {sd(dWS)}, s{idx_s} offen sc1", pos)

    def mfma(self, d, a, b, c=None):
        return self.P.b(f"v_mfma_f32_32x32x16_bf16 {d}, {a}, {b}, {c if c is not None else d}")

    def trpair(self, dst_kind, dst, addr, off, jstep, tag, pos0, pos1=None):
        f = vr if dst_kind == "v" else ar
        a = self.e(f"ds_read_b64_tr_b16 {f(dst, 2)}, {vr(addr)} offset:{off}", pos0, r=tag)
        b = self.e(f"ds_read_b64_tr_b16 {f(dst + 2, 2)}, {vr(addr)} offset:{off + jstep}", pos1 or pos0, r=tag)
        return [a, b]

    def colsum(self, frag, acc0, acc1, t0, pos):
        for r in range(4):
            self.e(f"v_lshlrev_b32 {vr(t0)}, 16, {vr(frag + r)}", pos)
            self.e(f"v_and_b32 {vr(t0 + 1)}, 0xffff0000, {vr(frag + r)}", pos)
            self.e(f"v_add_f32 {vr(acc0)}, {vr(acc0)}, {vr(t0)}", pos)
            self.e(f"v_add_f32 {vr(acc1)}, {vr(acc1)}, {vr(t0 + 1)}", pos)

    def halfsum(self, v, t, pos=None):
        self.e(f"v_mov_b32 {vr(t)}, {vr(v)}", pos)
        self.e(f"v_permlane32_swap_b32 {vr(v)}, {vr(t)}", pos)
        self.e(f"v_add_f32 {vr(v)}, {vr(v)}, {vr(t)}", pos)

    def mk_cfrag(self, dst, c, t, pos=None):
        self.e(f"v_cvt_pk_bf16_f32 {vr(dst)}, {vr(c)}, {vr(c)}", pos)
        self.e(f"v_mov_b32 {vr(dst + 2)}, 0", pos)
        self.e(f"v_and_b32 {vr(t)}, 0xffff0000, {vr(dst)}", pos)
        self.e(f"v_mov_b32 {vr(dst + 3)}, 0", pos)
        self.e(f"v_sub_f32 {vr(t)}, {vr(c)}, {vr(t)}", pos)
        self.e(f"v_cvt_pk_bf16_f32 {vr(dst + 1)}, {vr(t)}, {vr(t)}", pos)

    def mk_mfrag(self, dst, m, t, pos=None):
        self.e(f"v_cmp_gt_u32 vcc, 32, {vr(vL)}", pos)
        self.e(f"v_sub_f32 {vr(t)}, 0, {vr(m)}", pos)
        self.e(f"v_mov_b32 {vr(dst + 2)}, 0", pos)
        self.e(f"v_cndmask_b32 {vr(t)}, 0, {vr(t)}, vcc", pos)
        self.e(f"v_cvt_pk_bf16_f32 {vr(dst)}, {vr(t)}, {vr(t)}", pos)
        self.e(f"v_mov_b32 {vr(dst + 3)}, 0", pos)
        self.e(f"v_and_b32 {vr(dst)}, 0xffff0000, {vr(dst)}", pos)
        self.e(f"v_sub_f32 {vr(dst)}, {vr(t)}, {vr(dst)}", pos)
        self.e(f"v_cvt_pk_bf16_f32 {vr(dst)}, {vr(t)}, {vr(dst)}", pos)
        self.e(f"v_mov_b32 {vr(dst + 1)}, {vr(dst)}", pos)

    def gelu(self, acc, n, scale, dst, t, pos=None):
        c0 = -2.0 * LOG2E * math.sqrt(2.0 / math.pi)
        for i in range(0, n, 2):
            y0, y1 = acc + i, acc + i + 1
            a, b = t + (i & 2), t + (i & 2) + 1
            self.e(f"v_mul_f32 {vr(y0)}, {vr(y0)}, {vr(scale)}", pos)
            self.e(f"v_mul_f32 {vr(y1)}, {vr(y1)}, {vr(scale)}", pos)
            self.e(f"v_mul_f32 {vr(a)}, {vr(y0)}, {vr(y0)}", pos)
            self.e(f"v_mul_f32 {vr(b)}, {vr(y1)}, {vr(y1)}", pos)
            self.e(f"v_fmaak_f32 {vr(a)}, {vr(a)}, {vr(vGc)}, {fhex(c0)}", pos)
            self.e(f"v_fmaak_f32 {vr(b)}, {vr(b)}, {vr(vGc)}, {fhex(c0)}", pos)
            self.e(f"v_mul_f32 {vr(a)}, {vr(a)}, {vr(y0)}", pos)
            self.e(f"v_mul_f32 {vr(b)}, {vr(b)}, {vr(y1)}", pos)
            self.e(f"v_exp_f32 {vr(a)}, {vr(a)}", pos)
            self.e(f"v_exp_f32 {vr(b)}, {vr(b)}", pos)
            self.e(f"v_add_f32 {vr(a)}, 1.0, {vr(a)}", pos)
            self.e(f"v_add_f32 {vr(b)}, 1.0, {vr(b)}", pos)
            self.e(f"v_rcp_f32 {vr(a)}, {vr(a)}", pos)
            self.e(f"v_rcp_f32 {vr(b)}, {vr(b)}", pos)
            self.e(f"v_mul_f32 {vr(y0)}, {vr(y0)}, {vr(a)}", pos)
            self.e(f"v_mul_f32 {vr(y1)}, {vr(y1)}, {vr(b)}", pos)
            self.e(f"v_cvt_pk_bf16_f32 {vr(dst + i // 2)}, {vr(y0)}, {vr(y1)}", pos)

    def prologue(self):
        e = self.e
        P = self.P
        e("s_cmp_ge_u32 s2, 0x100")
        e("s_cbranch_scc1 L_end")
        if self.prof:
            e("s_memrealtime s[98:99]")
            e("s_memtime s[100:101]")
        for d, off in [(dX, 0), (dWQ, 24), (dW1, 48), (dWS, 96), (dK, 8), (dV, 16), (dWO, 32), (dW2, 56), (dW3, 64),
                       (dW4, 72), (dOUT, 80), (dDBG, 88)]:
            e(f"s_load_dwordx2 s[{d}:{d + 1}], s[0:1], {off}")
        e(f"s_load_dwordx2 s[{dH}:{dH + 1}], s[0:1], 96")
        e(f"v_lshrrev_b32 {vr(vT)}, 6, v0")
        e(f"v_lshlrev_b32 {vr(vT + 1)}, 4, v0")
        e(f"v_readfirstlane_b32 s{sW}, {vr(vT)}")
        e(f"v_and_b32 {vr(vL)}, 63, v0")
        if self.o["pfcode"]:
            e(f"s_getpc_b64 s[{dCODE}:{dCODE + 1}]")
            e(f"s_and_b32 s{dCODE}, s{dCODE}, 0xffffff00")
            e(f"s_mov_b32 s{dCODE + 2}, CODE_BYTES")
            e(f"s_mov_b32 s{dCODE + 3}, 0x20000")
            e(f"s_lshr_b32 s{sT0}, s2, 3")
            e(f"s_lshl_b32 s{sT0}, s{sT0}, 12")
            e(f"buffer_load_dwordx4 {ar(252, 4)}, {vr(vT + 1)}, {sd(dCODE)}, s{sT0} offen")
        e(f"s_and_b32 s{sT0}, s2, 7")
        e(f"s_lshr_b32 s{sT1}, s2, 3")
        e(f"s_and_b32 s{sR}, s{sT0}, 1")
        e(f"s_lshl_b32 s{sR}, s{sR}, 2")
        e(f"s_and_b32 s{sT2}, s{sT1}, 3")
        e(f"s_add_u32 s{sR}, s{sR}, s{sT2}")
        e(f"s_lshr_b32 s{sKq}, s{sT0}, 1")
        e(f"s_lshr_b32 s{sT1}, s{sT1}, 2")
        e(f"s_lshl_b32 s{sHd}, s{sKq}, 3")
        e(f"s_add_u32 s{sHd}, s{sHd}, s{sT1}")
        e(f"s_and_b32 s{sPar}, s{sHd}, 1")
        e(f"s_lshr_b32 s{sCb}, s{sHd}, 1")
        e(f"s_lshr_b32 s{sCt}, s{sT1}, 1")
        e(f"s_lshl_b32 s{sT0}, s{sR}, 1")
        e(f"s_add_u32 s{sRot}, s{sT0}, s{sHd}")
        e(f"s_lshl_b32 s{sTb}, s{sR}, 3")
        e(f"s_lshl_b32 s{sT0}, s{sW}, 1")
        e(f"s_add_u32 s{sTb}, s{sTb}, s{sT0}")
        e(f"s_add_u32 s{sTb}, s{sTb}, s{sPar}")
        e(f"s_lshl_b32 s{sCnt}, s{sR}, 12")
        for d, n in [(dX, 2097152), (dWQ, 4194304), (dW1, 524288), (dWS, WS_BYTES), (dK, 131072), (dV, 131072),
                     (dWO, 4194304), (dW2, 524288), (dW3, 1409024), (dW4, 1409024), (dOUT, 2097152), (dDBG, 256),
                     (dH, 2097152)]:
            e(f"s_mov_b32 s{d + 2}, {n}")
            e(f"s_mov_b32 s{d + 3}, 0x20000")
        e(f"s_lshl_b32 s{sMx}, s{sW}, 13")
        e(f"s_lshl_b32 s{sMq}, s{sW}, 12")
        e(f"s_add_u32 s{sMq}, s{sMq}, {L_WQ}")
        e(f"s_lshl_b32 s{sM1}, s{sW}, 10")
        e(f"s_add_u32 s{sM1}, s{sM1}, {L_W1}")
        e(f"s_lshl_b32 s{sMk}, s{sW}, 11")
        e(f"s_add_u32 s{sMv}, s{sMk}, {L_V}")
        e(f"s_add_u32 s{sMk}, s{sMk}, {L_K}")
        l, t = vr(vL), vT
        e(f"v_lshlrev_b32 {vr(vL16)}, 4, {l}")
        e(f"v_lshrrev_b32 {vr(t)}, 4, {l}")
        e(f"v_lshrrev_b32 {vr(t + 1)}, 3, {l}")
        e(f"v_and_b32 {vr(t + 2)}, 7, {l}")
        e(f"v_xor_b32 {vr(t + 2)}, {vr(t + 2)}, {vr(t)}")
        e(f"v_lshlrev_b32 {vr(t + 2)}, 4, {vr(t + 2)}")
        e(f"v_lshl_add_u32 {vr(t + 2)}, {vr(t + 1)}, 10, {vr(t + 2)}")
        e(f"s_lshl_b32 s{sT0}, s{sR}, 18")
        e(f"s_lshl_b32 s{sT1}, s{sW}, 16")
        e(f"s_add_u32 s{sT0}, s{sT0}, s{sT1}")
        e(f"s_lshl_b32 s{sT1}, s{sPar}, 15")
        e(f"s_add_u32 s{sT2}, s{sT0}, s{sT1}")
        e(f"s_xor_b32 s{sT1}, s{sT1}, 0x8000")
        e(f"s_add_u32 s{sT3}, s{sT0}, s{sT1}")
        e(f"v_add_u32 {vr(vG + 0)}, s{sT2}, {vr(t + 2)}")
        e(f"v_add_u32 {vr(vG + 4)}, s{sT3}, {vr(t + 2)}")
        for hi in (0, 4):
            e(f"v_xor_b32 {vr(vG + hi + 1)}, 64, {vr(vG + hi)}")
            e(f"v_add_u32 {vr(vG + hi + 2)}, {2 * 7168}, {vr(vG + hi)}")
            e(f"v_add_u32 {vr(vG + hi + 3)}, {3 * 7168}, {vr(vG + hi + 1)}")
            e(f"v_add_u32 {vr(vG + hi + 1)}, {7168}, {vr(vG + hi + 1)}")
        e(f"v_and_b32 {vr(t + 3)}, 15, {l}")
        e(f"v_lshlrev_b32 {vr(t + 4)}, 2, {vr(t)}")
        e(f"v_xor_b32 {vr(t + 4)}, {vr(t + 3)}, {vr(t + 4)}")
        e(f"v_lshlrev_b32 {vr(t + 4)}, 4, {vr(t + 4)}")
        e(f"s_lshl_b32 s{sT0}, s{sW}, 17")
        e(f"s_lshl_b32 s{sT1}, s{sHd}, 8")
        e(f"s_add_u32 s{sT0}, s{sT0}, s{sT1}")
        e(f"v_lshl_add_u32 {vr(vG + 8)}, {vr(t)}, 13, {vr(t + 4)}")
        e(f"v_add_u32 {vr(vG + 8)}, s{sT0}, {vr(vG + 8)}")
        for i in (1, 2, 3):
            e(f"v_add_u32 {vr(vG + 8 + i)}, {i * (32768 - 1024)}, {vr(vG + 8)}")
        e(f"v_lshrrev_b32 {vr(t + 5)}, 2, {l}")
        e(f"v_and_b32 {vr(t + 6)}, 3, {l}")
        e(f"v_lshlrev_b32 {vr(t + 7)}, 4, {vr(t + 6)}")
        e(f"v_lshl_add_u32 {vr(vG + 12)}, {vr(t + 5)}, 10, {vr(t + 7)}")
        e(f"s_lshl_b32 s{sT0}, s{sW}, 14")
        e(f"s_lshl_b32 s{sT1}, s{sCb}, 6")
        e(f"s_add_u32 s{sT0}, s{sT0}, s{sT1}")
        e(f"v_add_u32 {vr(vG + 12)}, s{sT0}, {vr(vG + 12)}")
        e(f"v_mov_b32 {vr(t + 8)}, {hex(OOB)}")
        e(f"s_or_b32 s{sT0}, s{sW}, s{sHd}")
        e(f"s_cmp_eq_u32 s{sT0}, 0")
        e(f"s_cselect_b32 s{sT0}, 18, 0")
        e(f"s_cselect_b32 s{sT2}, 1, 0")
        e(f"v_lshlrev_b32 {vr(t + 9)}, 7, {l}")
        e(f"v_cmp_gt_u32 vcc, s{sT0}, {l}")
        e(f"v_mov_b32 {vr(vOne)}, 0")
        e(f"s_cmp_eq_u32 s{sW}, 0")
        e(f"v_cndmask_b32 {vr(t + 9)}, {vr(t + 8)}, {vr(t + 9)}, vcc")
        e(f"s_cselect_b32 s{sT1}, 1, 0")
        e(f"v_cmp_gt_u32 vcc, s{sT2}, {l}")
        e(f"s_lshl_b32 s{sT3}, s{sR}, 2")
        e(f"v_mov_b32 {vr(t + 10)}, s{sT3}")
        e(f"v_cndmask_b32 {vr(t + 10)}, {vr(t + 8)}, {vr(t + 10)}, vcc")
        e(f"v_cmp_gt_u32 vcc, s{sT1}, {l}")
        e(f"s_lshl_b32 s{sT4}, s{sR}, 18")
        e(f"s_lshl_b32 s{sT5}, s{sHd}, 13")
        e(f"v_cndmask_b32 {vr(vSig)}, {vr(t + 8)}, 0, vcc")
        e(f"s_add_u32 s{sT4}, s{sT4}, s{sT5}")
        e(f"s_lshl_b32 s{sT5}, s{sW}, 11")
        e(f"s_add_u32 s{sT4}, s{sT4}, s{sT5}")
        e("s_waitcnt lgkmcnt(0)")
        self.stamp("start")
        if self.o.get("wsoff"):
            for d in (dWS, dH):
                e(f"s_add_u32 s{d}, s{d}, {self.o['wsoff']}")
                e(f"s_addc_u32 s{d + 1}, s{d + 1}, 0")
        zst = e(f"buffer_store_dword {vr(vOne)}, {vr(t + 9)}, {sd(dWS)}, s{sCnt} offen sc1")
        e(f"buffer_load_dwordx4 {vr(vS, 4)}, {vr(vL16)}, {sd(dX)}, s{sT4} offen")
        e(f"buffer_load_dwordx4 {vr(vS + 4, 4)}, {vr(vL16)}, {sd(dX)}, s{sT4} offen offset:1024")
        for s in range(self.o["npre"]):
            self.q_dma(s, None)
            self.stamp(f"dma{s}")
        e(f"s_lshl_b32 s{sT0}, s{sHd}, 19")
        e(f"s_add_u32 s{sT0}, s{sT0}, {1536 * 256}")
        for d in (dK, dV):
            e(f"s_add_u32 s{d}, s{d}, s{sT0}")
            e(f"s_addc_u32 s{d + 1}, s{d + 1}, 0")
        e(f"s_add_u32 s{dH}, s{dH}, {H}")
        e(f"s_addc_u32 s{dH + 1}, s{dH + 1}, 0")
        e(f"v_lshrrev_b32 {vr(t + 11)}, 5, {l}")
        e(f"v_and_b32 {vr(t + 12)}, 31, {l}")
        e(f"v_bfe_u32 {vr(t + 13)}, {l}, 2, 2")
        e(f"v_and_b32 {vr(t + 1)}, 1, {l}")
        e(f"v_lshlrev_b32 {vr(t + 1)}, 4, {vr(t + 1)}")
        e(f"v_and_b32 {vr(t + 2)}, 2, {l}")
        e(f"v_lshl_or_b32 {vr(t + 1)}, {vr(t + 2)}, 2, {vr(t + 1)}")
        e(f"v_and_b32 {vr(t + 2)}, 16, {l}")
        e(f"v_lshl_or_b32 {vr(t + 1)}, {vr(t + 2)}, 1, {vr(t + 1)}")
        e(f"v_lshl_add_u32 {vr(t + 2)}, {vr(t + 11)}, 3, {vr(t + 13)}")
        e(f"v_lshl_add_u32 {vr(vW64)}, {vr(t + 2)}, 6, {vr(t + 1)}")
        e(f"v_add_u32 {vr(vW64 + 1)}, {96 * K1}, {vr(vW64)}")
        e(f"v_add_u32 {vr(vG + 25)}, {L_W1}, {vr(vW64)}")
        e(f"s_lshl_b32 s{sT0}, s{sW}, 10")
        e(f"v_add_u32 {vr(vG + 26)}, s{sT0}, {vr(vG + 25)}")
        e(f"v_lshl_add_u32 {vr(t + 2)}, {vr(t + 2)}, 8, {vr(t + 1)}")
        e(f"v_lshl_add_u32 {vr(t + 2)}, {vr(t + 13)}, 6, {vr(t + 2)}")
        e(f"v_add_u32 {vr(vVa)}, {L_V}, {vr(t + 2)}")
        e(f"s_lshl_b32 s{sT0}, s{sW}, 6")
        e(f"v_xor_b32 {vr(t + 2)}, s{sT0}, {vr(t + 2)}")
        e(f"v_add_u32 {vr(vG + 21)}, {L_WQ}, {vr(t + 2)}")
        for q in (1, 2, 3):
            e(f"v_xor_b32 {vr(vVa + q)}, {q * 64}, {vr(vVa)}")
            e(f"v_xor_b32 {vr(vG + 21 + q)}, {q * 64}, {vr(vG + 21)}")
        e(f"v_bfe_u32 {vr(t + 2)}, {l}, 1, 3")
        e(f"v_xor_b32 {vr(t + 2)}, {vr(t + 2)}, {vr(t + 11)}")
        e(f"v_lshlrev_b32 {vr(t + 2)}, 4, {vr(t + 2)}")
        e(f"v_lshl_add_u32 {vr(t + 2)}, {vr(t + 12)}, 7, {vr(t + 2)}")
        e(f"v_add_u32 {vr(vG + 13)}, s{sMx}, {vr(t + 2)}")
        for ks in (1, 2, 3):
            e(f"v_xor_b32 {vr(vG + 13 + ks)}, {ks * 32}, {vr(vG + 13)}")
        for ks in range(4):
            e(f"v_add_u32 {vr(vG + 17 + ks)}, 0x10000, {vr(vG + 13 + ks)}")
        e(f"v_and_b32 {vr(t + 2)}, 19, {l}")
        e(f"v_and_b32 {vr(t + 1)}, 4, {l}")
        e(f"v_lshl_or_b32 {vr(t + 2)}, {vr(t + 1)}, 1, {vr(t + 2)}")
        e(f"v_and_b32 {vr(t + 1)}, 8, {l}")
        e(f"v_lshrrev_b32 {vr(t + 1)}, 1, {vr(t + 1)}")
        e(f"v_or_b32 {vr(t + 2)}, {vr(t + 2)}, {vr(t + 1)}")
        e(f"v_and_b32 {vr(t + 1)}, 15, {vr(t + 2)}")
        e(f"v_xor_b32 {vr(t + 1)}, {vr(t + 1)}, {vr(t + 11)}")
        e(f"v_lshlrev_b32 {vr(t + 1)}, 4, {vr(t + 1)}")
        e(f"v_lshl_add_u32 {vr(t + 2)}, {vr(t + 2)}, 8, {vr(t + 1)}")
        e(f"v_xor_b32 {vr(t + 2)}, s{sT0}, {vr(t + 2)}")
        e(f"v_add_u32 {vr(vKa)}, {L_K}, {vr(t + 2)}")
        for n in range(1, 8):
            e(f"v_xor_b32 {vr(vKa + n)}, {n * 32}, {vr(vKa)}")
        e(f"s_lshl_b32 s{sT0}, s{sW}, 11")
        e(f"v_lshl_add_u32 {vr(vVd)}, {vr(t)}, 8, {vr(t + 4)}")
        e(f"v_add_u32 {vr(vVd)}, s{sT0}, {vr(vVd)}")
        e(f"s_and_b32 s{sT1}, s{sW}, 1")
        e(f"s_lshl_b32 s{sT1}, s{sT1}, 3")
        e(f"v_xor_b32 {vr(t + 1)}, {vr(t + 3)}, {vr(t)}")
        e(f"v_xor_b32 {vr(t + 1)}, s{sT1}, {vr(t + 1)}")
        e(f"v_lshlrev_b32 {vr(t + 1)}, 4, {vr(t + 1)}")
        e(f"v_lshl_add_u32 {vr(vKd)}, {vr(t)}, 8, {vr(t + 1)}")
        e(f"v_add_u32 {vr(vKd)}, s{sT0}, {vr(vKd)}")
        e(f"v_xor_b32 {vr(vKd + 1)}, 64, {vr(vKd)}")
        e(f"v_mov_b32 {vr(vGc)}, {fhex(-2.0 * LOG2E * math.sqrt(2.0 / math.pi) * 0.044715)}")
        for i in range(4):
            e(f"v_mov_b32 {vr(vCs + i)}, 0")
            e(f"v_mov_b32 {vr(vLs + i)}, 0")
        e(f"v_mov_b32 {vr(vOne)}, 1")
        P.wait(vm=[zst])
        e(f"buffer_store_dword {vr(vOne)}, {vr(t + 10)}, {sd(dDBG)}, 0 offen sc1")
        u = vP
        for rw in range(2):
            for r in range(4):
                e(f"v_lshlrev_b32 {vr(u + 8 * rw + 2 * r)}, 16, {vr(vS + 4 * rw + r)}")
                e(f"v_and_b32 {vr(u + 8 * rw + 2 * r + 1)}, 0xffff0000, {vr(vS + 4 * rw + r)}")
        a = vS + 8
        for rw in range(2):
            e(f"v_add_f32 {vr(a + rw)}, {vr(u + 8 * rw)}, {vr(u + 8 * rw + 1)}")
        for i in range(2, 8):
            for rw in range(2):
                e(f"v_add_f32 {vr(a + rw)}, {vr(a + rw)}, {vr(u + 8 * rw + i)}")
        self.allreduce2(a, a + 2)
        for rw in range(2):
            e(f"v_mul_f32 {vr(a + rw)}, {fhex(1.0 / 512)}, {vr(a + rw)}")
        b = vS + 12
        for i in range(8):
            for rw in range(2):
                e(f"v_sub_f32 {vr(u + 8 * rw + i)}, {vr(u + 8 * rw + i)}, {vr(a + rw)}")
        for rw in range(2):
            e(f"v_mul_f32 {vr(b + rw)}, {vr(u + 8 * rw)}, {vr(u + 8 * rw)}")
        for i in range(1, 8):
            for rw in range(2):
                e(f"v_fmac_f32 {vr(b + rw)}, {vr(u + 8 * rw + i)}, {vr(u + 8 * rw + i)}")
        self.allreduce2(b, a + 2)
        e(f"v_cmp_eq_u32 vcc, 0, {l}")
        e(f"v_mov_b32 {vr(u + 3)}, 0")
        e(f"v_mov_b32 {vr(u + 5)}, {fhex(1e-5)}")
        e(f"v_cndmask_b32 {vr(u)}, {vr(a + 1)}, {vr(a)}, vcc")
        e(f"v_cndmask_b32 {vr(u + 4)}, {vr(b + 1)}, {vr(b)}, vcc")
        e(f"v_mul_f32 {vr(u + 4)}, {fhex(1.0 / 512)}, {vr(u + 4)}")
        e(f"v_add_f32 {vr(u + 1)}, {vr(u + 4)}, {vr(u + 5)}")
        e(f"v_rsq_f32 {vr(u + 1)}, {vr(u + 1)}")
        e(f"v_cmp_gt_u32 vcc, 2, {l}")
        e(f"v_mul_f32 {vr(u + 4)}, {vr(u + 4)}, {vr(u + 1)}")
        e(f"v_fmac_f32 {vr(u + 5)}, {vr(u + 4)}, {vr(u + 1)}")
        e(f"v_rsq_f32 {vr(u + 5)}, {vr(u + 5)}")
        e(f"v_cndmask_b32 {vr(u + 6)}, {vr(t + 8)}, {vr(vL16)}, vcc")
        e(f"v_mul_f32 {vr(u + 2)}, {vr(u + 5)}, {vr(u + 1)}")
        e(f"s_lshr_b32 s{sT4}, s{sT4}, 6")
        e(f"s_add_u32 s{sT4}, s{sT4}, {STATS}")
        self.st_store = e(f"buffer_store_dwordx4 {vr(u, 4)}, {vr(u + 6)}, {sd(dWS)}, s{sT4} offen sc1")
        e(f"v_cmp_gt_u32 vcc, 8, {l}")
        e(f"v_lshlrev_b32 {vr(vHv)}, 2, {l}")
        e(f"v_mov_b32 {vr(vHv + 1)}, 0")
        e(f"v_cndmask_b32 {vr(vHv)}, {vr(t + 8)}, {vr(vHv)}, vcc")
        e(f"v_cndmask_b32 {vr(vHv + 1)}, 0, {vr(vOne)}, vcc")

    def allreduce2(self, a, t):
        e = self.e
        for m in ("quad_perm:[1,0,3,2]", "quad_perm:[2,3,0,1]", "row_half_mirror", "row_mirror"):
            for rw in range(2):
                e(f"v_add_f32_dpp {vr(a + rw)}, {vr(a + rw)}, {vr(a + rw)} {m} row_mask:0xf bank_mask:0xf")
        for op in ("v_permlane16_swap_b32", "v_permlane32_swap_b32"):
            for rw in range(2):
                e(f"v_mov_b32 {vr(t + rw)}, {vr(a + rw)}")
            for rw in range(2):
                e(f"{op} {vr(a + rw)}, {vr(t + rw)}")
            for rw in range(2):
                e(f"v_add_f32 {vr(a + rw)}, {vr(a + rw)}, {vr(t + rw)}")

    def q_dma(self, s, gaps):
        P, e = self.P, self.e
        sl = s % 3
        tx = P.tag(f"x{s}", L_X + sl * 32 * K1, L_X + (sl + 1) * 32 * K1, shared=False)
        tq = P.tag(f"q{s}", L_WQ + sl * 16 * K1, L_WQ + (sl + 1) * 16 * K1)
        t1 = P.tag(f"w1_{s}", L_W1 + sl * 4 * K1, L_W1 + (sl + 1) * 4 * K1)
        at = (lambda n, d=0: ("at", gaps[n] + d)) if gaps else (lambda n, d=0: None)
        g0 = at(0, -4)
        e(f"s_add_u32 s{sKc}, s{sRot}, {s}", g0)
        e(f"s_and_b32 s{sKc}, s{sKc}, 7", g0)
        e(f"s_lshl_b32 s{sOq}, s{sKc}, 19", at(0, -3))
        e(f"s_lshl_b32 s{sOx}, s{sKc}, 7", at(0, -2))
        n = 0
        e(f"s_add_u32 m0, s{sMq}, {sl * 16 * K1}", at(n, -1))
        if not gaps:
            e(f"s_lshl_b32 s{sO1}, s{sKc}, 16")
        for i in range(4):
            e(f"buffer_load_dwordx4 {vr(vG + 8 + i)}, {sd(dWQ)}, s{sOq} offen offset:{i * 1024} lds", at(n), w=tq)
            n += 1
        for hi in range(2):
            e(f"s_add_u32 m0, s{sMx}, {sl * 32 * K1 + hi * 4096}", at(n, -1))
            for i in range(4):
                e(f"buffer_load_dwordx4 {vr(vG + 4 * hi + i)}, {sd(dX)}, s{sOx} offen offset:{i * 1024} lds", at(n), w=tx)
                n += 1
        if gaps:
            e(f"s_lshl_b32 s{sO1}, s{sKc}, 16", at(n, -2))
        e(f"s_add_u32 m0, s{sM1}, {sl * 4 * K1}", at(n, -1))
        e(f"buffer_load_dwordx4 {vr(vG + 12)}, {sd(dW1)}, s{sO1} offen lds", at(n), w=t1)

    def q_reads(self, n, gaps):
        s, ks = n >> 2, n & 3
        sl, p = s % 3, n & 1
        e = self.e
        at = (lambda k: ("at", gaps[k])) if gaps else (lambda k: None)
        ops = []
        ops += self.trpair("v", vA0 + 4 * p, vG + 21, sl * 16 * K1 + ks * 4096, 1024, f"q{s}", at(0))
        xa = (vG + 13 + ks) if sl < 2 else (vG + 17 + ks)
        xo = sl * 32 * K1 if sl < 2 else 0
        for b in range(2):
            ops.append(e(f"ds_read_b128 {ar(32 + 8 * p + 4 * b, 4)}, {vr(xa)} offset:{xo + b * 4096}", at(1), r=f"x{s}"))
        for q in (1, 2, 3):
            ops += self.trpair("a", 16 * p + 4 * (q - 1), vG + 21 + q, sl * 16 * K1 + ks * 4096, 1024, f"q{s}", at(1 + q))
        ops += self.trpair("a", 16 * p + 12, vG + 25, sl * 4 * K1 + ks * 1024, 256, f"w1_{s}", at(5))
        return ops

    def kv_dma(self, kind, j, gaps):
        P, e = self.P, self.e
        ns = 4 if kind == "K" else 3
        base = (L_K if kind == "K" else L_V) + (j % ns) * 8 * K1
        tg = P.tag(f"{kind}{j}", base, base + 8 * K1)
        st = sTk if kind == "K" else sTv
        at = (lambda n, d=0: ("at", self.add(gaps[n], d))) if gaps else (lambda n, d=0: None)
        e(f"s_lshl_b32 s{st}, s{sR}, 1", at(0, -3))
        e(f"s_add_u32 s{st}, s{st}, {j}", at(0, -3))
        e(f"s_and_b32 s{st}, s{st}, 15", at(0, -2))
        e(f"s_lshl_b32 s{st}, s{st}, 13", at(0, -2))
        e(f"s_add_u32 m0, s{sMk if kind == 'K' else sMv}, {(j % ns) * 8 * K1}", at(0, -1))
        for i in range(2):
            v = (vKd + i) if kind == "K" else vVd
            e(f"buffer_load_dwordx4 {vr(v)}, {sd(dK if kind == 'K' else dV)}, s{st} offen offset:{i * 1024} lds", at(i), w=tg)

    @staticmethod
    def add(g, d):
        return (g[0], g[1] + d) if isinstance(g, tuple) else g + d

    def w64_voff(self, stride, scol, pos):
        e = self.e
        e(f"s_mul_i32 s{sT5}, s{sW}, {128 * stride}", pos)
        e(f"s_add_u32 s{sT5}, s{sT5}, s{scol}", pos)
        e(f"v_lshrrev_b32 {vr(vDt)}, 2, {vr(vL)}", pos)
        e(f"v_mul_u32_u24 {vr(vDt)}, {stride}, {vr(vDt)}", pos)
        e(f"v_and_b32 {vr(vDt + 1)}, 3, {vr(vL)}", pos)
        e(f"v_lshl_add_u32 {vr(vDt)}, {vr(vDt + 1)}, 4, {vr(vDt)}", pos)
        e(f"v_add_u32 {vr(vDt)}, s{sT5}, {vr(vDt)}", pos)
        for i in (1, 2, 3):
            e(f"v_add_u32 {vr(vDt + i)}, {i * (16 * stride - 1024)}, {vr(vDt)}", pos)

    def w64_dma(self, tag, srd, stride, ldsbase, extra, gaps):
        P, e = self.P, self.e
        tg = P.tag(tag, ldsbase, ldsbase + 32 * K1)
        for n in range(8):
            g = gaps[n]
            if n % 4 == 0:
                e(f"s_mov_b32 s{sU0}, {(n >> 2) * 64 * stride + extra}", ("at", g - 1))
            if n % 4 == 0 or gaps[n] - gaps[n - 1] > 4:
                e(f"s_add_u32 m0, s{sMx}, {ldsbase + (n >> 2) * 4096}", ("at", g - 1))
            e(f"buffer_load_dwordx4 {vr(vDt + (n & 3))}, {sd(srd)}, s{sU0} offen offset:{(n & 3) * 1024} lds", ("at", g), w=tg)

    def qproj(self):
        P, e = self.P, self.e
        self.stamp("pro")
        P.barrier(pub=["q0", "w1_0"])
        self.stamp("q0rdy")
        rd = self.q_reads(0, None)
        P.mark("qproj")
        Q0 = P.here()
        qb = lambda n: Q0 + 9 * n
        for n in range(32):
            s, ks, p = n >> 2, n & 3, n & 1
            g = qb(n)
            if ks == 0 and s > 0:
                self.stamp(f"qs{s}", ("at", g + 7))
            if n == 0 and self.o["npre"] == 2:
                self.q_dma(2, [g + 5, g + 6, g + 7, g + 8] + [g + 9 * a + b for a in (1, 2) for b in (4, 5, 6, 7, 8)][:9])
            if ks == 3:
                pub = [f"q{s + 1}", f"w1_{s + 1}"] if s < 7 else []
                vm = list(P.tags[f"x{s + 1}"].writers) if s < 7 else []
                if s == 1:
                    vm.append(self.st_store)
                P.barrier(("at", g), pub=pub, vm=vm, done=[f"q{s}", f"w1_{s}", f"x{s}"])
                if s == 1:
                    self.signal(sCnt, ("at", g + 1))
            nxt = None
            if n < 31:
                nxt = self.q_reads(n + 1, [g + k for k in range(6)] if ks != 3 else [g + 1 + k for k in range(6)])
                P.wait(("at", g + 8), lg=nxt)
            if ks == 1:
                self.trpair("v", vC1, vG + 26, (s % 3) * 4 * K1, 256, f"w1_{s}", ("at", g + 6))
            if ks == 3:
                dg = [g + 7, g + 8] + [g + 9 * a + b for a in (1, 2, 3) for b in (5, 6, 7, 8)]
                if s + 3 < 8:
                    self.q_dma(s + 3, dg[:13])
                elif s == 5:
                    for k, (kind, j) in enumerate([("K", 0), ("V", 0), ("K", 1)]):
                        self.kv_dma(kind, j, [g + 8 + 9 * k, g + 15 + 9 * k])
                elif s == 6:
                    for k, (kind, j) in enumerate([("V", 1), ("K", 2)]):
                        self.kv_dma(kind, j, [g + 8 + 9 * k, g + 15 + 9 * k])
            if n == 4:
                self.poll_issue(vr(vHv), dDBG, 0, ("at", g + 3))
            if n == 6:
                self.poll_check(vr(vHv + 1), ("at", g + 8))
            if n == 22:
                e(f"v_mov_b32 {vr(vHv)}, 0", ("at", g))
                self.poll_issue(vr(vHv), dWS, f"s{sCnt}", ("at", g + 3))
            if n == 25:
                self.poll_check(32, ("at", g + 8))
            if n == 26:
                e(f"v_and_b32 {vr(vHv)}, 31, {vr(vL)}", ("at", g))
                e(f"v_lshlrev_b32 {vr(vHv)}, 4, {vr(vHv)}", ("at", g))
                e(f"s_lshl_b32 s{sT0}, s{sTb}, 9", ("at", g + 1))
                e(f"s_add_u32 s{sT0}, s{sT0}, {STATS}", ("at", g + 2))
                e(f"s_xor_b32 s{sT1}, s{sT0}, 512", ("at", g + 3))
                e(f"buffer_load_dwordx4 {vr(vSt, 4)}, {vr(vHv)}, {sd(dWS)}, s{sT0} offen sc1", ("at", g + 6))
                e(f"buffer_load_dwordx4 {vr(vSt + 4, 4)}, {vr(vHv)}, {sd(dWS)}, s{sT1} offen sc1", ("at", g + 7))
            A = [vr(vA0 + 4 * p, 4)] + [ar(16 * p + 4 * (q - 1), 4) for q in (1, 2, 3)]
            B = [ar(32 + 8 * p + 4 * b, 4) for b in range(2)]
            for q in range(4):
                for b in range(2):
                    d = vr(vQ + (2 * q + b) * 16, 16)
                    self.mfma(d, A[q], B[b], "0" if n == 0 else None)
            self.mfma(vr(vGa, 16), ar(16 * p + 12, 4), B[0], "0" if n == 0 else None)
            self.colsum(vA0 + 4 * p, vCs, vCs + 1, vT, ("st", "cs", g, g + 8))
            if ks == 2:
                self.colsum(vC1, vCs + 2, vCs + 3, vT + 2, ("st", "cs1", g, g + 17))
        self.stamp("qmain")
        P.mark("qepi")
        t = vT
        e(f"v_add_f32 {vr(vCs)}, {vr(vCs)}, {vr(vCs + 1)}")
        e(f"v_add_f32 {vr(vCs + 2)}, {vr(vCs + 2)}, {vr(vCs + 3)}")
        self.halfsum(vCs, t)
        self.halfsum(vCs + 2, t + 1)
        P.tag("cs", L_SCR, L_SCR + 1024)
        e(f"v_and_b32 {vr(t + 2)}, 31, {vr(vL)}")
        e(f"v_lshlrev_b32 {vr(t + 2)}, 2, {vr(t + 2)}")
        e(f"v_add_u32 {vr(t + 2)}, {L_SCR}, {vr(t + 2)}")
        e(f"s_lshl_b32 s{sT0}, s{sW}, 7")
        e(f"v_add_u32 {vr(t + 3)}, s{sT0}, {vr(t + 2)}")
        e(f"ds_write_b32 {vr(t + 3)}, {vr(vCs)}", w="cs")
        e(f"ds_write_b32 {vr(t + 3)}, {vr(vCs + 2)} offset:512", w="cs")
        for q in (1, 2, 3):
            e(f"v_xor_b32 {vr(t + 3 + q)}, {q * 128}, {vr(t + 3)}")
        P.barrier(pub=["cs"])
        for q in range(4):
            e(f"ds_read_b32 {vr(t + 8 + q)}, {vr(t + 3 + q)}", r="cs")
        for q in range(4):
            e(f"ds_read_b32 {vr(vCs + q)}, {vr(t + 2)} offset:{512 + 128 * q}", r="cs")
        self.kv_dma("K", 3, None)
        self.kv_dma("V", 2, None)
        e(f"s_lshl_b32 s{sT4}, s{sCb}, 6")
        self.w64_voff(1024, sT4, None)
        self.mk_mfrag(vG + 20, vSt, t)
        self.mk_mfrag(vG + 24, vSt + 4, t)
        e(f"v_add_f32 {vr(vCs)}, {vr(vCs)}, {vr(vCs + 1)}")
        e(f"v_add_f32 {vr(vCs + 2)}, {vr(vCs + 2)}, {vr(vCs + 3)}")
        e(f"v_add_f32 {vr(vCs)}, {vr(vCs)}, {vr(vCs + 2)}")
        self.mk_cfrag(vG + 16, vCs, t)
        for q in range(4):
            self.mk_cfrag(vG + 4 * q, t + 8 + q, t)
        self.mfma(vr(vGa, 16), vr(vG + 16, 4), vr(vG + 20, 4))
        for q in range(4):
            for b in range(2):
                self.mfma(vr(vQ + (2 * q + b) * 16, 16), vr(vG + 4 * q, 4), vr(vG + 20 + 4 * b, 4))
        self.gelu(vGa, 16, vSt + 2, vA0, t)
        e(f"s_lshl_b32 s{sT0}, s{sTb}, 15")
        e(f"s_lshl_b32 s{sT1}, s{sCb}, 11")
        e(f"s_add_u32 s{sT0}, s{sT0}, s{sT1}")
        self.h_st = [e(f"buffer_store_dwordx4 {vr(vA0 + 4 * i, 4)}, {vr(vL16)}, {sd(dH)}, s{sT0} offen offset:{i * 1024} sc1")
                     for i in range(2)]
        sc = 128 ** -0.5 * LOG2E
        e(f"v_mul_f32 {vr(t)}, {fhex(sc)}, {vr(vSt + 1)}")
        e(f"v_mul_f32 {vr(t + 1)}, {fhex(sc)}, {vr(vSt + 5)}")
        for tl in range(8):
            b = tl & 1
            for r in range(0, 16, 2):
                a = vQ + tl * 16 + r
                e(f"v_mul_f32 {vr(a)}, {vr(a)}, {vr(t + b)}")
                e(f"v_mul_f32 {vr(a + 1)}, {vr(a + 1)}, {vr(t + b)}")
                e(f"v_cvt_pk_bf16_f32 {vr(vQ + tl * 8 + r // 2)}, {vr(a)}, {vr(a + 1)}")
        self.stamp("qepi")

    def k_reads(self, j, gaps):
        ops = []
        for n in range(8):
            pos = ("at", gaps[n]) if gaps else None
            ops.append(self.e(f"ds_read_b128 {ar(128 + 4 * n, 4)}, {vr(vKa + n)} offset:{(j % 4) * 8 * K1}", pos, r=f"K{j}"))
        return ops

    def v_read(self, j, ks, db, gap):
        return self.trpair("a", 160 + 16 * ks + 4 * db, vVa + db, (j % 3) * 8 * K1 + ks * 4096, 1024, f"V{j}", ("at", gap))

    def qk(self, b):
        for n in range(8):
            self.mfma(vr(vS + 16 * b, 16), ar(128 + 4 * n, 4), vr(vQ + (2 * (n >> 1) + b) * 8 + 4 * (n & 1), 4), "0" if n == 0 else None)

    def sm(self, j, b, after, dl):
        e = self.e
        pos = ("st", "sm", after, dl)
        S = vS + 16 * b
        Pd = vP + 16 * (j & 1) + 8 * b
        e(f"v_exp_f32 {vr(S)}, {vr(S)}", pos)
        for r in range(16):
            if r < 15:
                e(f"v_exp_f32 {vr(S + r + 1)}, {vr(S + r + 1)}", pos)
            e(f"v_add_f32 {vr(vLs + 2 * b + (r & 1))}, {vr(vLs + 2 * b + (r & 1))}, {vr(S + r)}", pos)
            if r & 1:
                e(f"v_cvt_pk_bf16_f32 {vr(Pd + r // 2)}, {vr(S + r - 1)}, {vr(S + r)}", pos)

    def attention(self):
        P, e = self.P, self.e
        JG = self.o["JG2"]
        P.barrier(pub=["K0", "V0", "K1"], vm=self.h_st)
        e(f"s_add_u32 s{sT0}, s{sCnt}, {C_H * 128}")
        self.signal(sT0)
        kr = self.k_reads(0, None)
        P.mark("attn")
        g = P.here()
        G = {}
        for j in range(-1, 16):
            for name in ("q0", "p0", "q1", "p1", "g2"):
                if name[0] == "q" and j == 15 or name[0] == "p" and j == -1:
                    continue
                if name == "g2" and not (JG <= j < JG + 4):
                    continue
                G[(j, name)] = g
                g += 8
        self.G = G
        end = g
        vwait = None
        for j in range(-1, 16):
            if j < 15:
                g = G[(j, "q0")]
                if j == -1:
                    vr_ = []
                    for n in range(8):
                        vr_ += self.v_read(0, n >> 2, n & 3, g + n)
                    vwait = vr_
                self.extras(j, "q0", g)
                self.stamp(f"a{j}", ("at", g + 5))
                self.qk(0)
                self.sm(j + 1, 0, g + 8 + 2, G.get((j + 1, "q0"), G[(j + 1, "p0")]) - 1)
            if j >= 0:
                g = G[(j, "p0")]
                P.wait(("at", g - 1), lg=vwait)
                self.extras(j, "p0", g)
                self.pv(j, 0, None)
            if j < 15:
                g = G[(j, "q1")]
                pub = ([f"K{j + 2}"] if 1 < j + 2 < 16 else []) + ([f"V{j + 1}"] if j >= 0 else [])
                done = [f"K{j + 1}"] + ([f"V{j}"] if j >= 0 else [])
                x = self.bar_extras(j)
                P.barrier(("at", g - 1), pub=pub + x["pub"], done=done + x["done"], vm=x["vm"])
                self.after_bar(j, g)
                self.qk(1)
                if j == 14:
                    self.x1_loads(16, 24, 128, [g + 13 + n for n in range(8)])
                if j + 2 < 16:
                    kr = self.k_reads(j + 2, [g + n for n in range(8)])
                    nq = G[(j + 1, "q0")]
                    P.wait(("at", nq - 1), lg=kr)
                if j + 5 < 16:
                    self.kv_dma("K", j + 5, [g + 3, g + 4])
                if j >= 0 and j + 3 < 16:
                    self.kv_dma("V", j + 3, [g + 6, g + 7])
                self.sm(j + 1, 1, g + 8 + 2, G.get((j + 1, "q1"), G[(j + 1, "p1")]) - 1)
            if j >= 0:
                g = G[(j, "p1")]
                vwait = self.pv(j, 1, g if j < 15 else None)
            if (j, "g2") in G:
                self.g2_group(j - JG, G[(j, "g2")])
        self.stamp("attn")

    def pv(self, j, b, rgap):
        ops = []
        for n in range(8):
            ks, db = n >> 2, n & 3
            self.mfma(ar((2 * db + b) * 16, 16), ar(160 + 16 * ks + 4 * db, 4), vr(vP + 16 * (j & 1) + 8 * b + 4 * ks, 4),
                      "0" if (j == 0 and ks == 0) else None)
            if rgap is not None:
                ops += self.v_read(j + 1, ks, db, rgap + n)
        return ops

    def bar_extras(self, j):
        JG = self.o["JG2"]
        x = dict(pub=[], done=[], vm=[])
        if j == JG - 1:
            x["pub"].append("w2")
        if j == JG + 4:
            x["done"].append("w2")
        if j == JG + 6:
            x["vm"] += self.x1_st
        if j == 14:
            x["pub"] += ["w3_0", "w3_1", "w3_2"]
        return x

    def xslots(self, j0, n, skip=0):
        L = [self.G[(j, "p1")] + k for j in range(j0, 16) for k in (1, 3, 5)]
        return L[skip:skip + n]

    def after_bar(self, j, g):
        e = self.e
        JG = self.o["JG2"]
        t = vT
        if j == JG + 6:
            e(f"s_lshl_b32 s{sT0}, s{sPar}, 7", ("at", g))
            e(f"s_add_u32 s{sT0}, s{sT0}, s{sCnt}", ("at", g))
            e(f"s_add_u32 s{sT0}, s{sT0}, {C_X1 * 128}", ("at", g + 1))
            self.signal(sT0, ("at", g + 2))
        if j == -1:
            self.w64_dma("w2", dW2, 1024, L_W2, 0, [g + 6, g + 7] + self.xslots(0, 6))
        if j == 2:
            pos = ("st", "w3v", g - 16, g - 10)
            e(f"s_mul_i32 s{sT3}, s{sCb}, 3", pos)
            e(f"s_lshl_b32 s{sT4}, s{sCb}, 1", pos)
            e(f"s_add_u32 s{sT4}, s{sT4}, 11", pos)
            e(f"s_cmp_lt_u32 s{sCb}, 11", ("at", g - 9))
            e(f"s_cselect_b32 s{sT4}, s{sT3}, s{sT4}", ("at", g - 9))
            e(f"s_lshl_b32 s{sU1}, s{sT4}, 6", ("at", g - 8))
            self.w64_voff(2752, sU1, ("st", "w3v2", g - 7, g + 6))
            self.w64_dma("w3_0", dW3, 2752, L_W3[0], 0, self.xslots(2, 8))
            self.w64_dma("w3_1", dW3, 2752, L_W3[1], 64, self.xslots(2, 8, 8))
        if j == JG + 4:
            self.w64_dma("w3_2", dW3, 2752, L_W3[2], 128, self.xslots(JG + 4, 8))
        if j == 14:
            self.wo_voff(("st", "wov", self.G[(13, "q0")], g - 2))
            self.wo_dma(0, L_K, [g + 2, g + 3, g + 4, g + 5, g + 6, g + 7, g + 9, g + 11])

    def extras(self, j, name, g):
        P, e = self.P, self.e
        JG = self.o["JG2"]
        t = vT
        if name == "q0" and j == 1 and self.o["pf"]:
            pos = ("st", "pfv", g, g + 14)
            e(f"s_lshr_b32 s{sT0}, s2, 3", pos)
            e(f"s_lshl_b32 s{sT1}, s{sT0}, 15", pos)
            e(f"s_lshl_b32 s{sT2}, s{sKq}, 20", pos)
            e(f"s_add_u32 s{sT1}, s{sT1}, s{sT2}", pos)
            e(f"s_lshl_b32 s{sT2}, s{sW}, 11", pos)
            e(f"s_add_u32 s{sT1}, s{sT1}, s{sT2}", pos)
            e(f"s_mul_i32 s{sT0}, s{sT0}, 43", pos)
            e(f"s_mul_i32 s{sT2}, s{sW}, 11", pos)
            e(f"s_add_u32 s{sT0}, s{sT0}, s{sT2}", pos)
            e(f"s_lshl_b32 s{sT0}, s{sT0}, 10", pos)
            e(f"s_and_b32 s{sT2}, s{sKq}, 1", pos)
            e(f"s_lshl_b32 s{sT2}, s{sT2}, 7", pos)
            e(f"s_add_u32 s{sT0}, s{sT0}, s{sT2}", pos)
            pos = ("st", "pfv", g + 15, g + 40)
            e(f"v_mov_b32 {vr(t + 2)}, {hex(OOB)}", pos)
            e(f"v_cmp_gt_u32 vcc, 16, {vr(vL)}", pos)
            e(f"v_lshlrev_b32 {vr(t)}, 7, {vr(vL)}", pos)
            e(f"v_add_u32 {vr(t)}, s{sT1}, {vr(t)}", pos)
            e(f"v_cndmask_b32 {vr(vCs)}, {vr(t + 2)}, {vr(t)}, vcc", pos)
            e(f"v_cmp_gt_u32 vcc, 11, {vr(vL)}", pos)
            e(f"v_lshlrev_b32 {vr(t)}, 10, {vr(vL)}", pos)
            e(f"v_add_u32 {vr(t)}, s{sT0}, {vr(t)}", pos)
            e(f"v_cndmask_b32 {vr(vCs + 1)}, {vr(t + 2)}, {vr(t)}, vcc", pos)
        if name == "p0" and 3 <= j < 11 and self.o["pf"]:
            k = j - 3
            gg = self.G[(j, "p1")] + 7
            if k < 4:
                e(f"s_movk_i32 s{sU2}, {k * 8192}", ("at", gg - 1))
                e(f"buffer_load_dword {vr([vC1 + 2, vC1 + 3, vCs + 2, vCs + 3][k % 4])}, {vr(vCs)}, {sd(dWO)}, s{sU2} offen", ("at", gg))
            else:
                e(f"buffer_load_dword {vr([vC1 + 2, vC1 + 3, vCs + 2, vCs + 3][k % 4])}, {vr(vCs + 1)}, {sd(dW4)}, 0 offen offset:{(k - 4) * 256}", ("at", gg))
        if name == "q0" and j == JG - 2:
            pos = ("st", "hp", g, g + 12)
            e(f"s_lshl_b32 s{sT0}, s{sPar}, 1", pos)
            e(f"s_add_u32 s{sT0}, s{sT0}, s{sR}", pos)
            e(f"s_sub_u32 s{sT0}, s{sT0}, 1", pos)
            e(f"s_lshl_b32 s{sT1}, s{sT0}, 12", pos)
            e(f"s_cmp_lt_u32 s{sT0}, 8", ("at", g + 5))
            e(f"s_cselect_b32 s{sT1}, s{sT1}, s{sCnt}", ("at", g + 5))
            pos = ("st", "hp2", g + 6, g + 12)
            e(f"v_and_b32 {vr(t)}, 1, {vr(vL)}", pos)
            e(f"v_mov_b32 {vr(t + 1)}, s{sCnt}", pos)
            e(f"v_cmp_eq_u32 vcc, 0, {vr(t)}", pos)
            e(f"v_mov_b32 {vr(t + 2)}, s{sT1}", pos)
            e(f"v_add_u32 {vr(t + 1)}, {C_H * 128}, {vr(t + 1)}", pos)
            e(f"v_add_u32 {vr(t + 2)}, {C_H * 128}, {vr(t + 2)}", pos)
            e(f"v_cndmask_b32 {vr(t + 4)}, {vr(t + 2)}, {vr(t + 1)}, vcc", pos)
            self.poll_issue(vr(t + 4), dWS, 0, ("at", g + 14))
        if name == "p0" and j == JG - 2:
            pos = ("st", "hv", g, g + 23)
            e(f"s_lshl_b32 s{sT0}, s{sTb}, 5", pos)
            e(f"v_and_b32 {vr(t)}, 31, {vr(vL)}", pos)
            e(f"v_add_u32 {vr(t)}, s{sT0}, {vr(t)}", pos)
            e(f"v_and_b32 {vr(t + 1)}, 32, {vr(vL)}", pos)
            for gi, dlt in enumerate((-1, 1, -2, 2)):
                e(f"v_add_u32 {vr(t + 2)}, {dlt}, {vr(t)}", pos)
                e(f"v_and_or_b32 {vr(t + 3)}, {vr(t + 2)}, 31, {vr(t + 1)}", pos)
                e(f"v_ashrrev_i32 {vr(t + 2)}, 5, {vr(t + 2)}", pos)
                e(f"v_lshlrev_b32 {vr(t + 3)}, 4, {vr(t + 3)}", pos)
                e(f"v_lshl_add_u32 {vr(vHv + gi)}, {vr(t + 2)}, 15, {vr(t + 3)}", pos)
            e(f"v_lshrrev_b32 {vr(t + 1)}, 1, {vr(t + 1)}", pos)
            e(f"v_lshl_add_u32 {vr(t + 5)}, {vr(t)}, 10, {vr(t + 1)}", pos)
            e(f"s_lshl_b32 s{sT0}, s{sCb}, 6", ("at", g + 24))
            e(f"buffer_load_dwordx4 {vr(vXt, 4)}, {vr(t + 5)}, {sd(dX)}, s{sT0} offen", ("at", g + 25))
            e(f"buffer_load_dwordx4 {vr(vXt + 4, 4)}, {vr(t + 5)}, {sd(dX)}, s{sT0} offen offset:32", ("at", g + 26))
        if name == "q0" and j == JG - 1:
            self.poll_check(32, ("at", g + 3))
        if name == "q0" and JG - 1 <= j < JG + 3:
            q = j - (JG - 1)
            gg = g + (5 if q == 0 else 1)
            for n in range(8):
                if n % 4 == 0:
                    e(f"s_mov_b32 s{sT2}, {(2 * q + (n >> 2)) * 4096}", ("at", gg + n - 1))
                e(f"buffer_load_dwordx4 {ar(192 + 32 * (q & 1) + 4 * n, 4)}, {vr(vHv + q)}, {sd(dH)}, s{sT2} offen offset:{(n & 3) * 1024} sc1",
                  ("at", gg + n))
        if name == "p0" and JG <= j < JG + 4:
            q = j - JG
            ops = []
            for n in range(8):
                ops += self.trpair("v", vG + 4 * n, vW64 + 1, (8 * q + n) * 1024, 256, "w2", ("at", g + n))
            P.wait(("at", g + 15), lg=ops)
        if name == "q0" and j == JG + 4:
            self.g2_epilogue(g + 2, g + 56)
        if name == "p0" and j == 12:
            e(f"s_lshl_b32 s{sT2}, s{sPar}, 7", ("at", g))
            e(f"s_add_u32 s{sT2}, s{sT2}, s{sCnt}", ("at", g + 1))
            e(f"s_add_u32 s{sT2}, s{sT2}, {C_X1 * 128}", ("at", g + 2))
            e(f"v_mov_b32 {vr(t + 4)}, 0", ("at", g + 2))
            self.poll_issue(vr(t + 4), dWS, f"s{sT2}", ("at", g + 17))
        if name == "q0" and j == 13:
            self.poll_check(16, ("at", g + 5))
            self.x1_loads(0, 16, 192, [g + 8 + 2 * n for n in range(4)] + [g + 25, g + 28] + [g + 32 + 2 * n for n in range(8)] + [g + 48, g + 49])

    def x1_loads(self, k0, k1, areg, gaps):
        e = self.e
        for i, n in enumerate(range(k0, k1)):
            at = (lambda d=0: ("at", gaps[i] + d)) if gaps else (lambda d=0: None)
            if n % 8 == 0:
                if n == 0:
                    e(f"s_lshl_b32 s{sU4}, s{sTb}, 15", at(-2))
                    e(f"s_add_u32 s{sU4}, s{sU4}, {X1}", at(-2))
                e(f"s_add_u32 s{sU3}, s{sW}, {n >> 3}", at(-1))
                e(f"s_and_b32 s{sU3}, s{sU3}, 3", at(-1))
                e(f"s_lshl_b32 s{sU3}, s{sU3}, 13", at(-1))
                e(f"s_add_u32 s{sU3}, s{sU3}, s{sU4}", at())
            elif n % 4 == 0:
                e(f"s_add_u32 s{sU3}, s{sU3}, 4096", at())
            e(f"buffer_load_dwordx4 {ar(areg + 4 * i, 4)}, {vr(vL16)}, {sd(dWS)}, s{sU3} offen offset:{(n & 3) * 1024} sc1", at())

    def g2_group(self, q, g):
        for n in range(8):
            self.mfma(vr(vGa, 16), vr(vG + 4 * n, 4), ar(192 + 32 * (q & 1) + 4 * n, 4), "0" if (q == 0 and n == 0) else None)

    def g2_epilogue(self, g, dl):
        e = self.e
        pos = ("st", "g2e", g, dl)
        t = vT + 6
        e(f"v_mul_f32 {vr(t)}, {vr(vSt)}, {vr(vSt + 1)}", pos)
        for r in range(8):
            a = vGa + 2 * r
            e(f"v_lshlrev_b32 {vr(t + 1)}, 16, {vr(vXt + r)}", pos)
            e(f"v_and_b32 {vr(t + 2)}, 0xffff0000, {vr(vXt + r)}", pos)
            e(f"v_fma_f32 {vr(t + 1)}, {vr(t + 1)}, {vr(vSt + 1)}, -{vr(t)}", pos)
            e(f"v_fma_f32 {vr(t + 2)}, {vr(t + 2)}, {vr(vSt + 1)}, -{vr(t)}", pos)
            e(f"v_add_f32 {vr(a)}, {vr(a)}, {vr(t + 1)}", pos)
            e(f"v_add_f32 {vr(a + 1)}, {vr(a + 1)}, {vr(t + 2)}", pos)
            e(f"v_cvt_pk_bf16_f32 {vr(vA0 + r)}, {vr(a)}, {vr(a + 1)}", pos)
            if r == 0:
                e(f"v_add_f32 {vr(vC1)}, {vr(a)}, {vr(a + 1)}", pos)
                e(f"v_mul_f32 {vr(vC1 + 1)}, {vr(a)}, {vr(a)}", pos)
            else:
                e(f"v_add_f32 {vr(vC1)}, {vr(vC1)}, {vr(a)}", pos)
                e(f"v_fmac_f32 {vr(vC1 + 1)}, {vr(a)}, {vr(a)}", pos)
                e(f"v_add_f32 {vr(vC1)}, {vr(vC1)}, {vr(a + 1)}", pos)
            e(f"v_fmac_f32 {vr(vC1 + 1)}, {vr(a + 1)}, {vr(a + 1)}", pos)
        self.halfsum(vC1, t + 1, pos)
        self.halfsum(vC1 + 1, t + 2, pos)
        e(f"v_cmp_gt_u32 vcc, 32, {vr(vL)}", pos)
        e(f"v_lshlrev_b32 {vr(t + 1)}, 3, {vr(vL)}", pos)
        e(f"v_mov_b32 {vr(t + 2)}, {hex(OOB)}", pos)
        e(f"v_cndmask_b32 {vr(t + 1)}, {vr(t + 2)}, {vr(t + 1)}, vcc", pos)
        e(f"s_lshl_b32 s{sT0}, s{sTb}, 15", pos)
        e(f"s_lshl_b32 s{sT1}, s{sCb}, 11", pos)
        e(f"s_add_u32 s{sT0}, s{sT0}, s{sT1}", pos)
        e(f"s_add_u32 s{sT0}, s{sT0}, {X1}", pos)
        st = [e(f"buffer_store_dwordx4 {vr(vA0 + 4 * i, 4)}, {vr(vL16)}, {sd(dWS)}, s{sT0} offen offset:{i * 1024} sc1", pos)
              for i in range(2)]
        e(f"s_lshl_b32 s{sT0}, s{sR}, 1", pos)
        e(f"s_add_u32 s{sT0}, s{sT0}, s{sPar}", pos)
        e(f"s_lshl_b32 s{sT0}, s{sT0}, 4", pos)
        e(f"s_add_u32 s{sT0}, s{sT0}, s{sCb}", pos)
        e(f"s_lshl_b32 s{sT0}, s{sT0}, 2", pos)
        e(f"s_add_u32 s{sT0}, s{sT0}, s{sW}", pos)
        e(f"s_lshl_b32 s{sT0}, s{sT0}, 8", pos)
        e(f"s_add_u32 s{sT0}, s{sT0}, {X1ST}", pos)
        st.append(e(f"buffer_store_dwordx2 {vr(vC1, 2)}, {vr(t + 1)}, {sd(dWS)}, s{sT0} offen sc1", pos))
        self.x1_st = st

    def wo_voff(self, pos):
        e = self.e
        e(f"s_lshl_b32 s{sT5}, s{sKq}, 20", pos)
        e(f"s_lshl_b32 s{sT6}, s{sW}, 15", pos)
        e(f"s_add_u32 s{sT5}, s{sT5}, s{sT6}", pos)
        e(f"s_lshl_b32 s{sT6}, s{sCt}, 8", pos)
        e(f"s_add_u32 s{sT5}, s{sT5}, s{sT6}", pos)
        e(f"v_and_b32 {vr(vDt)}, 0xff, {vr(vVd)}", pos)
        e(f"v_lshrrev_b32 {vr(vDt + 1)}, 4, {vr(vL)}", pos)
        e(f"v_lshl_add_u32 {vr(vDt)}, {vr(vDt + 1)}, 10, {vr(vDt)}", pos)
        e(f"v_add_u32 {vr(vDt)}, s{sT5}, {vr(vDt)}", pos)
        for i in (1, 2, 3):
            e(f"v_add_u32 {vr(vDt + i)}, {i * 3072}, {vr(vDt)}", pos)

    def wo_dma(self, i, base, gaps):
        P, e = self.P, self.e
        tg = P.tag(f"wo{i}", base, base + 32 * K1)
        at = (lambda n, d=0: ("at", self.add(gaps[n], d))) if gaps else (lambda n, d=0: None)
        for n in range(8):
            if n == 0:
                e(f"s_add_u32 s{sT6}, s{sHd}, {i}", at(n, -2))
                e(f"s_and_b32 s{sT6}, s{sT6}, 7", at(n, -2))
                e(f"s_lshl_b32 s{sT6}, s{sT6}, 17", at(n, -1))
            if n == 4:
                e(f"s_add_u32 s{sT6}, s{sT6}, 0x4000", at(n))
            if n % 4 == 0:
                e(f"s_add_u32 m0, s{sMx}, {base + (n >> 2) * 4096}", at(n, -1) if n == 0 else at(n))
            e(f"buffer_load_dwordx4 {vr(vDt + (n & 3))}, {sd(dWO)}, s{sT6} offen offset:{(n & 3) * 1024} lds", at(n), w=tg)

    def o_epilogue_stream(self, b, after, st_gaps):
        e = self.e
        pos = ("st", "oe", after)
        tt0 = vS + 24
        for db in range(4):
            src = (2 * db + b) * 16
            dst = vQ + b * 32 + db * 8
            for r in range(0, 16, 2):
                tt = tt0 + (r & 2)
                e(f"v_accvgpr_read_b32 {vr(tt)}, {ar(src + r)}", pos)
                e(f"v_accvgpr_read_b32 {vr(tt + 1)}, {ar(src + r + 1)}", pos)
                e(f"v_mul_f32 {vr(tt)}, {vr(tt)}, {vr(vLs + 2 * b)}", pos)
                e(f"v_mul_f32 {vr(tt + 1)}, {vr(tt + 1)}, {vr(vLs + 2 * b)}", pos)
                e(f"v_cvt_pk_bf16_f32 {vr(dst + r // 2)}, {vr(tt)}, {vr(tt + 1)}", pos)
            for i in range(2):
                n = 2 * db + i
                p = ("st", "ost", st_gaps[n])
                if n == 4:
                    e(f"s_add_u32 s{sU5 + b}, s{sU5 + b}, 4096", p)
                self.o_st.append(e(f"buffer_store_dwordx4 {vr(dst + 4 * i, 4)}, {vr(vL16)}, {sd(dWS)}, s{sU5 + b} offen offset:{(n & 3) * 1024}{self.o['ost']}", p))

    def g3(self):
        P, e = self.P, self.e
        t = vT
        G = self.G
        acc = vG
        cacc = [vGa, vP, vP + 16]
        fa = vS
        ones = vT + 8
        xs = vSt
        ad = vHv
        p0, p1 = G[(15, "p0")], G[(15, "p1")]
        g0 = P.here()
        for b, after in ((0, p0 + 1), (1, p1)):
            pos = ("st", "oe", after)
            e(f"v_add_f32 {vr(vLs + 2 * b)}, {vr(vLs + 2 * b)}, {vr(vLs + 2 * b + 1)}", pos)
            self.halfsum(vLs + 2 * b, vLs + 2 * b + 1, pos)
            e(f"v_rcp_f32 {vr(vLs + 2 * b)}, {vr(vLs + 2 * b)}", pos)
        pos = ("st", "g3s", p0 - 8, p0 + 4)
        e(f"s_lshl_b32 s{sU5}, s{sTb}, 18", pos)
        e(f"s_lshl_b32 s{sT1}, s{sHd}, 13", pos)
        e(f"s_add_u32 s{sU5}, s{sU5}, s{sT1}", pos)
        e(f"s_add_u32 s{sU5}, s{sU5}, {OO}", pos)
        e(f"s_xor_b32 s{sU6}, s{sU5}, 0x40000", pos)
        e(f"s_lshl_b32 s{sT2}, s{sR}, 1", pos)
        e(f"s_add_u32 s{sT2}, s{sT2}, s{sPar}", pos)
        e(f"s_lshl_b32 s{sT2}, s{sT2}, 6", pos)
        e(f"s_add_u32 s{sT2}, s{sT2}, s{sW}", pos)
        e(f"s_lshl_b32 s{sT2}, s{sT2}, 8", pos)
        e(f"s_add_u32 s{sT2}, s{sT2}, {X1ST}", pos)
        e(f"s_add_u32 s{sT3}, s{sT2}, 4096", pos)
        pos = ("st", "g3v", p0 + 2, p1 + 2)
        e(f"v_add_u32 {vr(ad)}, s{sMx}, {vr(vW64)}", pos)
        e(f"v_add_u32 {vr(ad + 1)}, s{sMx}, {vr(vW64 + 1)}", pos)
        for i in range(4):
            e(f"v_mov_b32 {vr(ones + i)}, 0x3f803f80", pos)
        e(f"v_and_b32 {vr(t)}, 31, {vr(vL)}", pos)
        e(f"v_lshrrev_b32 {vr(t + 1)}, 5, {vr(vL)}", pos)
        e(f"v_lshlrev_b32 {vr(t + 2)}, 2, {vr(t)}", pos)
        e(f"v_lshlrev_b32 {vr(t)}, 3, {vr(t)}", pos)
        e(f"v_add_u32 {vr(t + 2)}, {L_SCR + 1024}, {vr(t + 2)}", pos)
        e(f"v_lshl_add_u32 {vr(t)}, {vr(t + 1)}, 13, {vr(t)}", pos)
        e(f"s_lshl_b32 s{sT0}, s{sW}, 7", ("at", p0 + 1))
        e(f"v_add_u32 {vr(t + 3)}, s{sT0}, {vr(t + 2)}", pos)
        self.x1_loads(24, 32, 160, [p1 + 1 + n for n in range(7)] + [g0 + 1])
        kg = lambda n: g0 + (6 * n if n < 8 else 48 + 3 * (n - 8))
        for i in range(8):
            e(f"buffer_load_dwordx2 {vr(xs + 2 * i, 2)}, {vr(t)}, {sd(dWS)}, s{sT2 if i < 4 else sT3} offen offset:{(i & 3) * 1024} sc1",
              ("at", kg(i) + 4))
        self.o_st = []
        sg = self.o["ostg"]
        self.o_epilogue_stream(0, p1 + 3, [g0 + x for x in sg[:8]])
        self.o_epilogue_stream(1, g0 + 3, [g0 + x for x in sg[8:]])

        def rd(n, gaps):
            ops = []
            if n % 8 == 0 and n:
                gp = ("at", gaps[0] - 2)
                e(f"s_add_u32 s{sT0}, s{sW}, {n >> 3}", ("at", gaps[0] - 4))
                e(f"s_and_b32 s{sT0}, s{sT0}, 3", ("at", gaps[0] - 3))
                e(f"s_lshl_b32 s{sT0}, s{sT0}, 13", gp)
                e(f"v_add_u32 {vr(ad)}, s{sT0}, {vr(vW64)}", ("at", gaps[0] - 1))
                e(f"v_add_u32 {vr(ad + 1)}, s{sT0}, {vr(vW64 + 1)}", ("at", gaps[0] - 1))
            for c in range(3):
                ops += self.trpair("v", fa + 12 * (n & 1) + 4 * c, ad + (c == 2), (L_W3[c] if c < 2 else 0) + (n & 7) * 1024, 256, f"w3_{c}", ("at", gaps[c]))
            return ops
        P.wait(("at", g0 - 1), lg=rd(0, [p1 + 4, p1 + 5, p1 + 5]))
        P.mark("g3")
        P.tag("cs3", L_SCR + 1024, L_SCR + 3072)
        for n in range(32):
            g = kg(n)
            if n < 31:
                P.wait(("at", kg(n + 1) - 1), lg=rd(n + 1, [g, g, g + 1] if n >= 8 else [g, g + 1, g + 2]))
            breg = 192 + 4 * n if n < 16 else 128 + 4 * (n - 16)
            for c in range(3):
                self.mfma(vr(acc + 16 * c, 16), vr(fa + 12 * (n & 1) + 4 * c, 4), ar(breg, 4), "0" if n == 0 else None)
            if n < 8:
                for c in range(3):
                    self.mfma(vr(cacc[c], 16), vr(ones, 4), vr(fa + 12 * (n & 1) + 4 * c, 4), "0" if n == 0 else None)
            if n == 10:
                for c in range(3):
                    e(f"ds_write_b32 {vr(t + 3)}, {vr(cacc[c])} offset:{512 * c}", ("at", g + c), w="cs3")
            if n == 13:
                P.barrier(("at", g + 2), pub=["cs3", "wo0"])
                ops = []
                for c in range(3):
                    for q in range(4):
                        ops.append(e(f"ds_read_b32 {vr(vGa + 4 * c + q)}, {vr(t + 2)} offset:{512 * c + 128 * q}", ("at", g + 5 + 3 * (2 * c + (q >> 1))), r="cs3"))
                pos = ("st", "oe", kg(21), kg(31) + 1)
                for i in range(1, 8):
                    e(f"v_add_f32 {vr(xs)}, {vr(xs)}, {vr(xs + 2 * i)}", pos)
                    e(f"v_add_f32 {vr(xs + 1)}, {vr(xs + 1)}, {vr(xs + 2 * i + 1)}", pos)
                self.halfsum(xs, t + 4, pos)
                self.halfsum(xs + 1, t + 5, pos)
                e(f"v_mul_f32 {vr(xs)}, {fhex(1.0 / 512)}, {vr(xs)}", pos)
                e(f"v_mul_f32 {vr(xs + 1)}, {fhex(1.0 / 512)}, {vr(xs + 1)}", pos)
                e(f"v_fma_f32 {vr(xs + 1)}, -{vr(xs)}, {vr(xs)}, {vr(xs + 1)}", pos)
                e(f"v_max_f32 {vr(xs + 1)}, 0, {vr(xs + 1)}", pos)
                e(f"v_add_f32 {vr(xs + 1)}, {fhex(1e-5)}, {vr(xs + 1)}", pos)
                e(f"v_rsq_f32 {vr(xs + 1)}, {vr(xs + 1)}", pos)
                self.mk_mfrag(vP + 12, xs, t + 4, pos)
                for c in range(3):
                    a = vGa + 4 * c
                    e(f"v_add_f32 {vr(a)}, {vr(a)}, {vr(a + 1)}", pos)
                    e(f"v_add_f32 {vr(a + 2)}, {vr(a + 2)}, {vr(a + 3)}", pos)
                    e(f"v_add_f32 {vr(a)}, {vr(a)}, {vr(a + 2)}", pos)
                    self.mk_cfrag(vP + 4 * c, a, t + 4, pos)
        for c in range(3):
            self.mfma(vr(acc + 16 * c, 16), vr(vP + 4 * c, 4), vr(vP + 12, 4))
        P.mark("g3epi")
        self.stamp("g3main")
        P.barrier(done=["w3_0", "w3_1", "w3_2", "cs3"] + [f"V{j}" for j in (13, 14, 15)])
        e(f"s_mul_i32 s{sT0}, s{sTb}, {86 * 1024}")
        e(f"s_lshl_b32 s{sT1}, s{sU1}, 5")
        e(f"s_add_u32 s{sT0}, s{sT0}, s{sT1}")
        e(f"s_add_u32 s{sU3}, s{sT0}, {H3}")
        e(f"s_add_u32 s{sU4}, s{sU3}, 4096")
        e(f"s_cmp_lt_u32 s{sCb}, 11")
        e(f"s_cselect_b32 s{sT2}, 0, {hex(OOB)}")
        e(f"v_or_b32 {vr(t + 8)}, s{sT2}, {vr(vL16)}")
        e(f"s_lshl_b32 s{sT0}, s{sKq}, 7")
        e(f"s_add_u32 s{sT0}, s{sT0}, s{sCnt}")
        e(f"s_add_u32 s{sU2}, s{sT0}, {C_O * 128}")
        self.h3_st = []
        ge0 = P.here()
        for c in range(3):
            self.gelu(acc + 16 * c, 16, xs + 1, vQ + 32 + 8 * c, t + 4)
            for i in range(2):
                n = 2 * c + i
                self.h3_st.append(e(f"buffer_store_dwordx4 {vr(vQ + 32 + 8 * c + 4 * i, 4)}, {vr(vL16 if c < 2 else t + 8)}, {sd(dWS)}, "
                                    f"s{sU3 if n < 4 else sU4} offen offset:{(n & 3) * 1024} sc1"))
            if c == self.o["osig"]:
                P.barrier(vm=self.o_st)
                self.signal(sU2)
                self.stamp("osig")
        step = (P.here() - ge0 - 8) // 24
        for i, base in ((1, 0), (2, 32 * K1), (3, 96 * K1)):
            self.wo_dma(i, base, [ge0 + 4 + step * (8 * (i - 1) + n) for n in range(8)])
        self.stamp("g3")

    G4SLOT = [96 * K1, 128 * K1, 64 * K1, 0, 32 * K1]

    def g4_dma(self, c, gaps):
        P, e = self.P, self.e
        base = self.G4SLOT[c % 5]
        tg = P.tag(f"g4_{c}", base, base + 32 * K1)
        at = (lambda n, d=0: ("at", gaps[n] + d)) if gaps else (lambda n, d=0: None)
        for ee in range(2):
            n = 4 * ee
            e(f"s_lshl_b32 s{sT6}, s{sW}, 1", at(n, -1))
            e(f"s_add_u32 s{sT6}, s{sT6}, {8 * c + ee}", at(n, -1))
            e(f"s_lshl_b32 s{sT5}, s{sT6}, 14", at(n, -1))
            e(f"s_add_u32 m0, s{sMx}, {base + ee * 4096}", at(n))
            e(f"s_lshl_b32 s{sT6}, s{sT6}, 10", at(n))
            e(f"buffer_load_dwordx4 {vr(vHv)}, {sd(dW4)}, s{sT5} offen lds", at(n), w=tg)
            e(f"buffer_load_dwordx4 {vr(vHv + 1)}, {sd(dW4)}, s{sT5} offen offset:1024 lds", at(n + 1), w=tg)
            e(f"buffer_load_dwordx4 {vr(vHv + 2)}, {sd(dWS)}, s{sT6} offen offset:2048 sc1 lds", at(n + 2), w=tg)
            e(f"buffer_load_dwordx4 {vr(vHv + 3)}, {sd(dWS)}, s{sT6} offen offset:3072 sc1 lds", at(n + 3), w=tg)

    def oproj(self):
        P, e = self.P, self.e
        t = vT
        acc = vG
        fa = vS
        wa = vKa
        slots = [64 * K1, 0, 32 * K1, 96 * K1, 128 * K1, 64 * K1, 0, 32 * K1]
        for c in range(4):
            e(f"v_add_u32 {vr(t + c)}, {-L_V & 0xffffffff}, {vr(vVa + c)}")
        for c in range(4):
            e(f"v_mov_b32 {vr(wa + 8 + c)}, {vr(vVa + c)}")
        for c in range(4):
            e(f"v_mov_b32 {vr(wa + c)}, {vr(t + c)}")
            e(f"v_add_u32 {vr(wa + 4 + c)}, 0x10000, {vr(t + c)}")
        e(f"v_lshrrev_b32 {vr(t)}, 3, {vr(vL)}")
        e(f"v_bfe_u32 {vr(t + 1)}, {vr(vL)}, 4, 1")
        e(f"v_lshlrev_b32 {vr(t + 1)}, 2, {vr(t + 1)}")
        e(f"v_and_b32 {vr(t + 2)}, 7, {vr(vL)}")
        e(f"v_xor_b32 {vr(t + 1)}, {vr(t + 1)}, {vr(t + 2)}")
        e(f"v_lshlrev_b32 {vr(t + 1)}, 4, {vr(t + 1)}")
        e(f"v_lshl_add_u32 {vr(t)}, {vr(t)}, 10, {vr(t + 1)}")
        e(f"s_and_b32 s{sT0}, s{sKq}, 1")
        e(f"s_lshl_b32 s{sT0}, s{sT0}, 7")
        e(f"s_lshl_b32 s{sT1}, s{sCt}, 8")
        e(f"s_add_u32 s{sT0}, s{sT0}, s{sT1}")
        e(f"v_add_u32 {vr(vHv)}, s{sT0}, {vr(t)}")
        e(f"v_add_u32 {vr(vHv + 1)}, 7168, {vr(vHv)}")
        e(f"s_lshr_b32 s{sT0}, s{sKq}, 1")
        e(f"s_lshl_b32 s{sT0}, s{sT0}, 2")
        e(f"s_lshl_b32 s{sT1}, s{sR}, 3")
        e(f"s_add_u32 s{sT0}, s{sT0}, s{sT1}")
        e(f"s_add_u32 s{sRot}, s{sT0}, s{sPar}")
        e(f"s_mul_i32 s{sT0}, s{sRot}, {86 * 1024}")
        e(f"s_add_u32 s{sT0}, s{sT0}, {H3 - 2048}")
        e(f"v_add_u32 {vr(vHv + 2)}, s{sT0}, {vr(vL16)}")
        e(f"v_add_u32 {vr(vHv + 3)}, {2 * 86 * 1024 - 1024}, {vr(vHv + 2)}")
        e(f"s_lshl_b32 s{sT0}, s{sPar}, 7")
        e(f"s_add_u32 s{sT0}, s{sT0}, s{sCnt}")
        e(f"s_add_u32 s{sKc}, s{sT0}, {C_H3 * 128}")
        e(f"v_mov_b32 {vr(t + 4)}, 0")
        self.poll_issue(vr(t + 4), dWS, f"s{sU2}")
        self.poll_check(8)
        self.stamp("owait")
        e(f"s_lshl_b32 s{sOx}, s{sTb}, 18")
        e(f"s_lshl_b32 s{sT1}, s{sKq}, 16")
        e(f"s_add_u32 s{sOx}, s{sOx}, s{sT1}")
        e(f"s_add_u32 s{sOx}, s{sOx}, {OO}")

        def bload(m, gap):
            i, n = 1 + m // 8, m % 8
            at = (lambda d=0: ("at", gap + d)) if gap is not None else (lambda d=0: None)
            if n == 0:
                e(f"s_add_u32 s{sOq}, s{sHd}, {i}", at(-2))
                e(f"s_and_b32 s{sOq}, s{sOq}, 7", at(-2))
                e(f"s_lshl_b32 s{sOq}, s{sOq}, 13", at(-1))
                e(f"s_add_u32 s{sOq}, s{sOq}, s{sOx}", at(-1))
            if n == 4:
                e(f"s_add_u32 s{sOq}, s{sOq}, 4096", at(-1))
            e(f"buffer_load_dwordx4 {ar(4 * m, 4)}, {vr(vL16)}, {sd(dWS)}, s{sOq} offen offset:{(n & 3) * 1024} sc1", at())
        NPRE = self.o['npreb']
        for m in range(NPRE):
            bload(m, None)

        def rd(n, gaps):
            i, ks = n >> 3, n & 7
            base = slots[i]
            ops = []
            for c in range(4):
                pos = ("at", gaps[c]) if gaps else None
                ops += self.trpair("v", fa + 16 * (n & 1) + 4 * c, wa + 4 * (base >> 16) + c, (base & 0xffff) + ks * 4096, 1024, f"wo{i}", pos)
            return ops
        rd(0, None)
        P.mark("oproj")
        g0 = P.here()
        for n in range(64):
            i, ks = n >> 3, n & 7
            g = g0 + 4 * n
            if ks == 0:
                self.stamp(f"o{i}", ("at", g + 2))
            if n == 0:
                self.wo_dma(4, 128 * K1, [g + 3 + 3 * k for k in range(8)])
            if ks == 7:
                P.barrier(("at", g), pub=[f"wo{i + 1}"] if i < 7 else ["g4_0"], done=[f"wo{i}"], vm=self.h3_st if i == 0 else [])
                if i == 0:
                    self.signal(sKc, ("at", g + 1))
                dg = [g + 3 + 4 * k for k in range(8)]
                if i + 5 < 8:
                    self.wo_dma(i + 5, slots[i + 5], dg)
                elif i < 7:
                    self.g4_dma(i - 3, dg)
            if n < 63:
                P.wait(("at", g + 3), lg=rd(n + 1, [g, g, g + 1, g + 2] if ks != 7 else [g + 1, g + 1, g + 2, g + 2]))
            if NPRE + n < 56:
                bload(NPRE + n, g + 2)
            if n == 24:
                self.poll_issue(vr(t + 4), dWS, f"s{sKc}", ("at", g + 1))
            if n == 30:
                self.poll_check(16, ("at", g + 1))
            B = vr(vQ + 4 * ks, 4) if i == 0 else ar(4 * (n - 8), 4)
            for c in range(4):
                self.mfma(vr(acc + 16 * c, 16), vr(fa + 16 * (n & 1) + 4 * c, 4), B, "0" if n == 0 else None)
        self.stamp("oproj")
        P.mark("sst")
        self.g4_dma(4, None)
        e(f"s_lshl_b32 s{sT0}, s{sR}, 1")
        e(f"s_add_u32 s{sT0}, s{sT0}, s{sPar}")
        e(f"s_lshl_b32 s{sT0}, s{sT0}, 2")
        e(f"s_add_u32 s{sT0}, s{sT0}, s{sCt}")
        e(f"s_lshl_b32 s{sO1}, s{sT0}, 17")
        e(f"s_add_u32 s{sO1}, s{sO1}, {SP}")
        e(f"s_lshl_b32 s{sT0}, s{sKq}, 2")
        e(f"s_add_u32 s{sT0}, s{sT0}, s{sW}")
        e(f"s_lshl_b32 s{sT0}, s{sT0}, 13")
        e(f"s_add_u32 s{sT0}, s{sT0}, s{sO1}")
        self.s_st = []
        for n in range(8):
            if n == 4:
                e(f"s_add_u32 s{sT0}, s{sT0}, 4096")
            for r in range(4):
                e(f"v_cvt_pk_bf16_f32 {vr(vQ + 32 + 4 * n + r)}, {vr(acc + 8 * n + 2 * r)}, {vr(acc + 8 * n + 2 * r + 1)}")
            self.s_st.append(e(f"buffer_store_dwordx4 {vr(vQ + 32 + 4 * n, 4)}, {vr(vL16)}, {sd(dWS)}, s{sT0} offen offset:{(n & 3) * 1024} sc1"))

    def g4(self):
        P, e = self.P, self.e
        t = vT
        acc = vQ
        fr = vS
        aa, ab = vKa, vKa + 3
        sp = vQ + 16
        e(f"v_bfe_u32 {vr(t)}, {vr(vW64)}, 6, 4")
        e(f"v_and_b32 {vr(t + 1)}, 63, {vr(vW64)}")
        e(f"v_lshl_add_u32 {vr(t + 1)}, {vr(t)}, 7, {vr(t + 1)}")
        e(f"v_bfe_u32 {vr(t)}, {vr(t)}, 1, 1")
        e(f"s_and_b32 s{sT0}, s{sW}, 1")
        e(f"v_xor_b32 {vr(t)}, s{sT0}, {vr(t)}")
        e(f"v_lshl_add_u32 {vr(aa)}, {vr(t)}, 6, {vr(t + 1)}")
        e(f"s_lshr_b32 s{sT1}, s{sW}, 1")
        e(f"s_lshl_b32 s{sT2}, s{sT1}, 10")
        e(f"s_add_u32 s{sT2}, s{sT2}, 2048")
        e(f"v_add_u32 {vr(ab)}, s{sT2}, {vr(vL16)}")
        for k in (1, 2):
            e(f"v_add_u32 {vr(aa + k)}, {k * 0x10000}, {vr(aa)}")
            e(f"v_add_u32 {vr(ab + k)}, {k * 0x10000}, {vr(ab)}")
        e(f"s_lshl_b32 s{sT1}, s{sT1}, 1")
        e(f"s_add_u32 s{sTk}, s{sRot}, s{sT1}")
        e(f"s_and_b32 s{sT1}, s{sKq}, 1")
        e(f"s_lshl_b32 s{sT1}, s{sT1}, 1")
        e(f"s_add_u32 s{sT1}, s{sT1}, s{sT0}")
        e(f"s_lshl_b32 s{sTv}, s{sCt}, 2")
        e(f"s_add_u32 s{sTv}, s{sTv}, s{sT1}")
        e(f"s_lshl_b32 s{sT1}, s{sT1}, 11")
        e(f"s_add_u32 s{sO1}, s{sO1}, s{sT1}")
        e(f"s_and_b32 s{sT1}, s{sKq}, 2")
        e(f"s_lshr_b32 s{sT2}, s{sW}, 1")
        e(f"s_add_u32 s{sT1}, s{sT1}, s{sT2}")
        e(f"s_lshl_b32 s{sT1}, s{sT1}, 13")
        e(f"s_add_u32 s{sO1}, s{sO1}, s{sT1}")
        e(f"v_and_b32 {vr(t)}, 31, {vr(vL)}")
        e(f"v_lshrrev_b32 {vr(t + 1)}, 5, {vr(vL)}")
        e(f"v_lshlrev_b32 {vr(t + 1)}, 4, {vr(t + 1)}")
        e(f"v_lshl_add_u32 {vr(vDt)}, {vr(t)}, 10, {vr(t + 1)}")
        e(f"s_lshl_b32 s{sOx}, s{sTk}, 15")
        e(f"s_lshl_b32 s{sT1}, s{sTv}, 6")
        e(f"s_add_u32 s{sT2}, s{sOx}, s{sT1}")
        e(f"s_lshl_b32 s{sT1}, s{sTv}, 11")
        e(f"s_add_u32 s{sT3}, s{sOx}, s{sT1}")
        e(f"s_mov_b32 s{sOx}, s{sT2}")
        e(f"s_add_u32 s{sT3}, s{sT3}, {X1}")
        for i in range(2):
            e(f"buffer_load_dwordx4 {vr(vXt + 4 * i, 4)}, {vr(vDt)}, {sd(dX)}, s{sOx} offen offset:{32 * i}")
            e(f"buffer_load_dwordx4 {vr(vSt + 4 * i, 4)}, {vr(vL16)}, {sd(dWS)}, s{sT3} offen offset:{1024 * i} sc1")
        e(f"s_lshl_b32 s{sT0}, s{sPar}, 2")
        e(f"s_add_u32 s{sT0}, s{sT0}, s{sCt}")
        e(f"s_lshl_b32 s{sT0}, s{sT0}, 7")
        e(f"s_add_u32 s{sT0}, s{sT0}, s{sCnt}")
        e(f"s_add_u32 s{sKc}, s{sT0}, {C_S * 128}")
        LA = 3

        def rd(n, gap):
            c, k8 = n >> 3, n & 7
            base = self.G4SLOT[c % 5]
            pos = ("at", gap) if gap is not None else None
            f = fr + 8 * (n & 3)
            ops = self.trpair("v", f, aa + (base >> 16), (base & 0xffff) + k8 * 4096, 512, f"g4_{c}", pos)
            ops.append(e(f"ds_read_b128 {vr(f + 4, 4)}, {vr(ab + (base >> 16))} offset:{(base & 0xffff) + k8 * 4096}", pos, r=f"g4_{c}"))
            return ops
        reads = {n: rd(n, None) for n in range(LA)}
        self.stamp("g4pre")
        P.mark("g4")
        g0 = P.here()
        SIG = self.o['ssig']
        for n in range(86):
            g = g0 + n
            m = n + LA
            if m < 86:
                if m % 8 == 0:
                    c = m >> 3
                    P.barrier(("at", g), pub=[f"g4_{c}"], done=[f"g4_{c - 1}"], vm=self.s_st if c == SIG else [])
                    if c == SIG:
                        self.signal(sKc, ("at", g + 1))
                    if c + 4 < 11:
                        self.g4_dma(c + 4, [g + 1 + k for k in range(8)])
                reads[m] = rd(m, g)
            if n % 16 == 10:
                self.stamp(f"g4_{n}", ("at", g))
            if n + 1 < 86:
                P.wait(("at", g), lg=reads[n + 1])
            if n == 66:
                self.poll_issue(vr(t + 4), dWS, f"s{sKc}", ("at", g))
            f = fr + 8 * (n & 3)
            self.mfma(vr(acc, 16), vr(f, 4), vr(f + 4, 4), "0" if n == 0 else None)
        P.mark("final")
        self.stamp("g4main")
        self.poll_check(4)
        self.stamp("g4")
        sp = vG
        for src in range(4):
            if src:
                e(f"s_add_u32 s{sO1}, s{sO1}, 0x8000")
            for i in range(2):
                e(f"buffer_load_dwordx4 {vr(sp + 8 * src + 4 * i, 4)}, {vr(vL16)}, {sd(dWS)}, s{sO1} offen offset:{i * 1024} sc1")
        for r in range(8):
            a = acc + 2 * r
            tt = t + 6 + 2 * (r & 1)
            e(f"v_lshlrev_b32 {vr(tt)}, 16, {vr(vSt + r)}")
            e(f"v_and_b32 {vr(tt + 1)}, 0xffff0000, {vr(vSt + r)}")
            e(f"v_add_f32 {vr(a)}, {vr(a)}, {vr(tt)}")
            e(f"v_add_f32 {vr(a + 1)}, {vr(a + 1)}, {vr(tt + 1)}")
            e(f"v_mul_f32 {vr(tt)}, {fhex(-LOG2E)}, {vr(a)}")
            e(f"v_mul_f32 {vr(tt + 1)}, {fhex(-LOG2E)}, {vr(a + 1)}")
            e(f"v_exp_f32 {vr(tt)}, {vr(tt)}")
            e(f"v_exp_f32 {vr(tt + 1)}, {vr(tt + 1)}")
            e(f"v_add_f32 {vr(tt)}, 1.0, {vr(tt)}")
            e(f"v_add_f32 {vr(tt + 1)}, 1.0, {vr(tt + 1)}")
            e(f"v_rcp_f32 {vr(tt)}, {vr(tt)}")
            e(f"v_rcp_f32 {vr(tt + 1)}, {vr(tt + 1)}")
            e(f"v_mul_f32 {vr(a)}, {vr(a)}, {vr(tt)}")
            e(f"v_mul_f32 {vr(a + 1)}, {vr(a + 1)}, {vr(tt + 1)}")
        su = vG + 32
        for src in range(4):
            for r in range(8):
                tt = t + 6 + 2 * (r & 1)
                d = (su + 2 * r, su + 2 * r + 1) if src == 0 else (tt, tt + 1)
                e(f"v_lshlrev_b32 {vr(d[0])}, 16, {vr(sp + 8 * src + r)}")
                e(f"v_and_b32 {vr(d[1])}, 0xffff0000, {vr(sp + 8 * src + r)}")
                if src:
                    e(f"v_add_f32 {vr(su + 2 * r)}, {vr(su + 2 * r)}, {vr(tt)}")
                    e(f"v_add_f32 {vr(su + 2 * r + 1)}, {vr(su + 2 * r + 1)}, {vr(tt + 1)}")
                if src == 3:
                    a = acc + 2 * r
                    e(f"v_lshlrev_b32 {vr(tt)}, 16, {vr(vXt + r)}")
                    e(f"v_and_b32 {vr(tt + 1)}, 0xffff0000, {vr(vXt + r)}")
                    e(f"v_fmac_f32 {vr(tt)}, {vr(su + 2 * r)}, {vr(a)}")
                    e(f"v_fmac_f32 {vr(tt + 1)}, {vr(su + 2 * r + 1)}, {vr(a + 1)}")
                    e(f"v_cvt_pk_bf16_f32 {vr(vS + r)}, {vr(tt)}, {vr(tt + 1)}")
                    if r & 3 == 3:
                        e(f"buffer_store_dwordx4 {vr(vS + r - 3, 4)}, {vr(vDt)}, {sd(dOUT)}, s{sOx} offen offset:{32 * (r >> 2)}")
        self.stamp("end")

    def dump_stamps(self):
        if not self.prof:
            return
        e = self.e
        e("s_waitcnt vmcnt(0)")
        e(f"s_memrealtime s[{dK}:{dK + 1}]")
        e(f"s_memtime s[{dV}:{dV + 1}]")
        e("s_waitcnt lgkmcnt(0)")
        for k in range(max(0, self.nstamp - 2), self.nstamp):
            e(f"v_writelane_b32 {vr(vTr)}, s{84 + 2 * (k % 3)}, {k}")
        for k, sr in [(60, 98), (61, dK), (62, 100), (63, dV)]:
            e(f"v_writelane_b32 {vr(vTr)}, s{sr}, {k}")
        e(f"s_lshl_b32 s{sT0}, s2, 2")
        e(f"s_add_u32 s{sT0}, s{sT0}, s{sW}")
        e(f"s_lshl_b32 s{sT0}, s{sT0}, 8")
        e(f"s_add_u32 s{sT0}, s{sT0}, {PROF}")
        e(f"v_lshlrev_b32 {vr(vT)}, 2, {vr(vL)}")
        e(f"buffer_store_dword {vr(vTr)}, {vr(vT)}, {sd(dWS)}, s{sT0} offen")

    def build(self):
        P = self.P
        steps = [("pro", self.prologue), ("qproj", self.qproj), ("attn", self.attention),
                 ("g3", self.g3), ("oproj", self.oproj), ("g4", self.g4)]
        for name, fn in steps:
            fn()
            if self.stop == name:
                break
        self.dump_stamps()
        P.b("s_waitcnt vmcnt(0)")
        P.schedule()
        P.verify()
        P.finalize()
        body = P.text(comments=True)
        names = dict(x=dX, k=dK, v=dV, wq=dWQ, wo=dWO, w1=dW1, w2=dW2, w3=dW3, w4=dW4)
        for nm in self.o.get("nt", []):
            body = re.sub(r"(buffer_load_dwordx4 [^\n]*%s[^\n]*?offen(?: offset:\d+)?)" % re.escape(sd(names[nm])), r"\1 nt", body)
        nbytes = sum(i.size for i in P.final)
        code_bytes = (nbytes + 255) // 256 * 256
        body = body.replace("CODE_BYTES", str(code_bytes))
        hdr = open(os.path.join(os.path.dirname(os.path.abspath(__file__)), "header.txt")).read()
        return f"""{hdr}; @launch grid=(256,1,1) block=(256,1,1) lds=163840
.amdgcn_target "amdgcn-amd-amdhsa--gfx950"
.text
.globl {KNAME}
.p2align 8
.type {KNAME},@function
{KNAME}:
{body}L_end:
    s_endpgm
{''.join(P.ool)}
.section .rodata,"a"
.p2align 6
.amdhsa_kernel {KNAME}
  .amdhsa_next_free_vgpr 512
  .amdhsa_next_free_sgpr 102
  .amdhsa_accum_offset 256
  .amdhsa_group_segment_fixed_size 0
  .amdhsa_kernarg_size 104
  .amdhsa_user_sgpr_count 2
  .amdhsa_user_sgpr_kernarg_segment_ptr 1
  .amdhsa_system_sgpr_workgroup_id_x 1
  .amdhsa_float_denorm_mode_32 3
.end_amdhsa_kernel
"""


if __name__ == "__main__":
    import argparse, json
    ap = argparse.ArgumentParser()
    ap.add_argument("-o", default="recurrent_scan__sliding_block_cached__mixer_s_mlp__prompt.s")
    ap.add_argument("--prof", action="store_true")
    ap.add_argument("--stop")
    ap.add_argument("--opts", default="{}")
    a = ap.parse_args()
    g = Gen(a.prof, a.stop, json.loads(a.opts))
    txt = g.build()
    open(a.o, "w").write(txt)
    g.P.estimate([m for m in g.P.marks])
    if a.prof:
        open(a.o + ".stamps", "w").write(",".join(g.stamp_names))
        print("stamps:", len(g.stamp_names))
```
